```python
import torch

def _softmax(x, axis=-1):
    return torch.softmax(x, dim=axis)
def _gelu(x):
    return torch.nn.functional.gelu(x, approximate="tanh")
def _silu(x):
    return torch.nn.functional.silu(x)
def _sigmoid(x):
    return torch.sigmoid(x)
def _layernorm(x, axis=-1, eps=1e-5):
    m = x.mean(dim=axis, keepdim=True)
    v = x.var(dim=axis, keepdim=True, unbiased=False)
    return (x - m) / torch.sqrt(v + eps)
def _scatter_add(tgt, idx, src, axis=0):
    return tgt.clone().index_add_(axis, idx, src)
def _segment_sum(src, seg, n):
    out = torch.zeros((n,) + src.shape[1:], dtype=src.dtype)
    return out.index_add_(0, seg, src)
def _pad(x, pw):
    flat = tuple(v for pair in reversed(pw) for v in pair)
    return torch.nn.functional.pad(x, flat)

kernel_name = 'concat_heads__mha_block__spectral_fnet__prompt'

def setup_inputs():

    _w = (lambda a: (lambda t: t.to(torch.bfloat16) if t.is_floating_point() else t)(torch.as_tensor(a)))
    def _A_setup():
        B, S, D, H = 1, 2048, 1024, 32
        return {
            "x": _w((lambda *s: torch.randn(*s, dtype=torch.bfloat16) * 0.2)(B, S, D)),
            "wqkv": _w((lambda *s: torch.randn(*s, dtype=torch.bfloat16) * 0.8)(D, 3 * D)),
            "wo": _w((lambda *s: torch.randn(*s, dtype=torch.bfloat16) * 0.2)(D, D)),
        }
    _A_in = _A_setup()

    def _B_setup():
        B, S, D = 1, 2048, 1024
        ns = torch.arange(S)[:, None] * torch.arange(S)[None, :]
        nd = torch.arange(D)[:, None] * torch.arange(D)[None, :]
        Ws_re = torch.cos(-2.0 * torch.pi * ns / S).to(float)
        Ws_im = torch.sin(-2.0 * torch.pi * ns / S).to(float)
        Wd_re = torch.cos(-2.0 * torch.pi * nd / D).to(float)
        Wd_im = torch.sin(-2.0 * torch.pi * nd / D).to(float)
        return {
            "x": _w((lambda *s: torch.randn(*s, dtype=torch.bfloat16) * 0.05)(B, S, D)),
            "dft_seq_re": _w(Ws_re),
            "dft_seq_im": _w(Ws_im),
            "dft_hid_re": _w(Wd_re),
            "dft_hid_im": _w(Wd_im),
        }
    _B_in = _B_setup()

    return {
        "A_x": _A_in["x"],
        "A_wqkv": _A_in["wqkv"],
        "A_wo": _A_in["wo"],
        "B_x": _B_in["x"],
        "B_dft_seq_re": _B_in["dft_seq_re"],
        "B_dft_seq_im": _B_in["dft_seq_im"],
        "B_dft_hid_re": _B_in["dft_hid_re"],
        "B_dft_hid_im": _B_in["dft_hid_im"],
    }

def reference(A_x, A_wqkv, A_wo, B_x, B_dft_seq_re, B_dft_seq_im, B_dft_hid_re, B_dft_hid_im):
    def _A_ref(x, wqkv, wo):
        B, S, D = x.shape
        H = 32
        Dh = D // H
        qkv = (lambda x, *d: x.permute(*d))((x @ wqkv).reshape(B, S, 3, H, Dh), 2, 0, 3, 1, 4)
        q, k, v = qkv[0], qkv[1], qkv[2]
        scores = torch.einsum("bhqd,bhkd->bhqk", q, k) * (Dh ** -0.5)
        p = _softmax(scores, axis=-1)
        o = torch.einsum("bhqk,bhkd->bhqd", p, v)
        return (lambda x, *d: x.permute(*d))(o, 0, 2, 1, 3).reshape(B, S, D) @ wo

    def _B_ref(x, dft_seq_re, dft_seq_im, dft_hid_re, dft_hid_im):
        a = torch.einsum("bsd,ed->bse", x, dft_hid_re)
        b = torch.einsum("bsd,ed->bse", x, dft_hid_im)
        y = torch.einsum("ts,bse->bte", dft_seq_re, a) - torch.einsum("ts,bse->bte", dft_seq_im, b)
        return y

    a = _A_ref(A_x, A_wqkv, A_wo)
    b = _B_ref(B_x, B_dft_seq_re, B_dft_seq_im, B_dft_hid_re, B_dft_hid_im)
    return torch.concatenate([a, b], axis=-1)
```

```python
import re

class Asm:
    def __init__(self):
        self.lines = []
    def __call__(self, text):
        for ln in text.split("\n"):
            ln = ln.strip()
            if ln:
                if ln.endswith(":"):
                    self.lines.append(ln)
                else:
                    self.lines.append("    " + ln)
    def label(self, name):
        self.lines.append(name + ":")
    def raw(self, text):
        self.lines.append(text)
    def comment(self, text):
        self.lines.append("    ; " + text)
    def text(self):
        return "\n".join(self.lines) + "\n"

def vr(base, n=1):
    return f"v{base}" if n == 1 else f"v[{base}:{base+n-1}]"
def ar(base, n=1):
    return f"a{base}" if n == 1 else f"a[{base}:{base+n-1}]"
def sr(base, n=1):
    return f"s{base}" if n == 1 else f"s[{base}:{base+n-1}]"

_REG = re.compile(r"^(-|\|)?(?:abs\()?(?:neg\()?([vas])(?:(\d+)|\[(\d+):(\d+)\])\)?\|?$")

def regs_of(tok):
    tok = tok.strip()
    if tok in ("vcc",): return {("s", 106), ("s", 107)}
    if tok == "vcc_lo": return {("s", 106)}
    if tok == "vcc_hi": return {("s", 107)}
    if tok == "exec": return {("s", 126), ("s", 127)}
    if tok == "m0": return {("s", 124)}
    m = _REG.match(tok)
    if not m: return set()
    f = m.group(2)
    if m.group(3) is not None:
        return {(f, int(m.group(3)))}
    return {(f, i) for i in range(int(m.group(4)), int(m.group(5)) + 1)}

TRANS = ("v_exp_f32", "v_log_f32", "v_rcp_f32", "v_rsq_f32", "v_sqrt_f32", "v_sin_f32", "v_cos_f32",
         "v_exp_f16", "v_rcp_f16", "v_rcp_iflag_f32")

class I:
    __slots__ = ("idx", "op", "ops", "text", "dst", "src", "kind", "passes", "nop", "srcC", "srcAB", "target", "mods")

def mfma_passes(op):
    if "32x32x16" in op or "32x32x8" in op: return 8
    if "16x16x32_bf16" in op or "16x16x32_f16" in op or "16x16x16" in op: return 4
    if op.startswith("v_smfmac_f32_16x16x64"): return 4
    if op.startswith("v_smfmac_f32_32x32x32"): return 8
    if "4x4x4" in op: return 2
    raise ValueError("unknown mfma " + op)

def parse(lines):
    ins = []; labels = {}
    for ln in lines:
        s = ln.split(";")[0].strip()
        if not s: continue
        if s.endswith(":"):
            labels[s[:-1]] = len(ins); continue
        if s.startswith("."): continue
        parts = s.split(None, 1)
        op = parts[0]
        rest = parts[1] if len(parts) > 1 else ""
        toks = []; depth = 0; cur = ""
        for ch in rest:
            if ch == "[": depth += 1
            if ch == "]": depth -= 1
            if ch == "," and depth == 0:
                toks.append(cur.strip()); cur = ""
            else:
                cur += ch
        if cur.strip(): toks.append(cur.strip())
        mods = ""
        if toks:
            last = toks[-1].split(None, 1)
            if len(last) > 1 and not toks[-1].startswith("neg") :
                toks[-1] = last[0]; mods = last[1]
        i = I(); i.idx = len(ins); i.op = op; i.ops = toks; i.text = s; i.mods = mods
        i.dst = set(); i.src = set(); i.kind = "other"; i.passes = 0; i.nop = 1
        i.srcC = set(); i.srcAB = set(); i.target = None
        base = re.sub(r"_(e32|e64|sdwa|dpp)$", "", op)
        R = [regs_of(t) for t in toks]
        if op == "s_nop":
            i.kind = "nop"; i.nop = int(toks[0], 0) + 1
        elif op.startswith("v_mfma") or op.startswith("v_smfmac"):
            i.kind = "mfma"; i.passes = mfma_passes(op)
            i.dst = R[0]; i.srcAB = R[1] | R[2]
            if op.startswith("v_smfmac"):
                i.srcC = R[0]; i.srcAB |= R[3]
            else:
                i.srcC = R[3]
            i.src = i.srcAB | i.srcC
        elif op.startswith("v_"):
            i.kind = "valu"
            if base.startswith("v_cmp"):
                i.dst = R[0]; i.src = set().union(*R[1:])
            elif base in ("v_readfirstlane_b32", "v_readlane_b32"):
                i.dst = R[0]; i.src = set().union(*R[1:])
            elif base.startswith("v_permlane32_swap") or base.startswith("v_permlane16_swap"):
                i.dst = R[0] | R[1]; i.src = R[0] | R[1]
            elif base in ("v_add_co_u32", "v_sub_co_u32", "v_addc_co_u32", "v_subb_co_u32"):
                i.dst = R[0] | R[1]; i.src = set().union(*R[2:])
            else:
                i.dst = R[0]; i.src = set().union(*R[1:]) if len(R) > 1 else set()
                if base in ("v_fmac_f32", "v_dot2c_f32_bf16", "v_pk_fmac_f16", "v_writelane_b32") or "UNUSED_PRESERVE" in mods:
                    i.src |= R[0]
                if base == "v_cndmask_b32" and len(toks) == 3:
                    i.src |= regs_of("vcc")
        elif op.startswith("ds_"):
            i.kind = "ds"
            if op.startswith("ds_read") or op.startswith("ds_bpermute") or op.startswith("ds_permute") or op.startswith("ds_swizzle"):
                i.dst = R[0]; i.src = set().union(*R[1:])
            elif "_rtn" in op:
                i.dst = R[0]; i.src = set().union(*R[1:])
            else:
                i.src = set().union(*R)
        elif op.startswith("buffer_") or op.startswith("global_"):
            i.kind = "vmem"
            if op in ("buffer_wbl2", "buffer_inv"):
                pass
            elif " lds" in (" " + mods) or op.startswith("global_load_lds"):
                i.src = set().union(*R) | {("s", 124)}
                i.kind = "vmem_lds"
            elif "_load" in op:
                i.dst = R[0]; i.src = set().union(*R[1:])
            elif "atomic" in op:
                i.src = set().union(*R)
                if "sc0" in mods: i.dst = R[0]
            else:
                i.src = set().union(*R)
                i.kind = "vstore"
        elif op.startswith("s_"):
            i.kind = "salu"
            if op.startswith("s_cbranch") or op == "s_branch":
                i.kind = "branch"; i.target = toks[0]
            elif op in ("s_waitcnt", "s_barrier", "s_endpgm", "s_setprio", "s_sleep", "s_sethalt"):
                pass
            elif op.startswith("s_cmp") or op.startswith("s_bitcmp"):
                i.src = set().union(*R)
            elif op.startswith("s_load") or op.startswith("s_buffer_load") or op.startswith("s_mem"):
                i.kind = "smem"; i.dst = R[0]; i.src = set().union(*R[1:]) if len(R) > 1 else set()
            else:
                i.dst = R[0] if R else set(); i.src = set().union(*R[1:]) if len(R) > 1 else set()
                if "saveexec" in op:
                    i.dst = i.dst | regs_of("exec")
        ins.append(i)
    return ins, labels

def succs(ins, labels, i):
    if i.op == "s_endpgm": return []
    if i.op == "s_branch": return [labels[i.target]]
    out = []
    if i.idx + 1 < len(ins): out.append(i.idx + 1)
    if i.kind == "branch": out.append(labels[i.target])
    return out

def vg(rs):
    return {r for r in rs if r[0] in "va"}
def sg(rs):
    return {r for r in rs if r[0] == "s"}

def need(p, c):
    best = (0, "")
    def upd(n, why):
        nonlocal best
        if n > best[0]: best = (n, why)
    if p.kind == "valu":
        pv = vg(p.dst); ps = sg(p.dst)
        base = re.sub(r"_(e32|e64|sdwa|dpp)$", "", p.op)
        if c.kind == "mfma" and pv & c.src: upd(2, "VALU->MFMA operand")
        if c.kind == "valu":
            cb = re.sub(r"_(e32|e64|sdwa|dpp)$", "", c.op)
            if base in TRANS and cb not in TRANS and (pv & c.src): upd(1, "trans->VALU")
            if base in TRANS and cb in TRANS and (pv & c.src): upd(1, "trans->trans (pad)")
            if cb in ("v_readfirstlane_b32", "v_readlane_b32") and (pv & c.src): upd(1, "VALU->readlane")
            if cb.startswith("v_permlane") and (pv & c.src): upd(2, "VALU->permlane")
            if ("dpp" in c.op or "row_" in c.mods or "quad_perm" in c.mods) and (pv & c.src): upd(2, "VALU->DPP")
            if ps & sg(c.src): upd(2, "VALU sgpr->VALU const")
            if ("sdwa" in p.op or "op_sel" in p.mods) and (pv & (c.src | c.dst)): upd(1, "sdwa/opsel->VALU")
            if cb in ("v_readlane_b32", "v_writelane_b32") and ps and len(c.ops) > 2 and (ps & regs_of(c.ops[2])): upd(4, "VALU sgpr->lane select")
        if c.kind in ("vmem", "vmem_lds", "vstore") and (ps & sg(c.src)): upd(5, "VALU sgpr->VMEM")
        if c.kind == "mfma" and (ps & {("s",126),("s",127)}): upd(4, "VALU exec->MFMA")
    if p.kind == "mfma":
        n = p.passes
        tab_valu = {2: 5, 4: 8, 8: 12, 16: 20}[n]
        tab_c = {2: 4, 4: 6, 8: 10, 16: 18}[n]
        tab_war = {2: 1, 4: 3, 8: 7, 16: 15}[n]
        if c.kind == "mfma":
            if p.dst & c.srcAB: upd(tab_valu, "MFMA D->MFMA A/B")
            if p.dst & c.srcC:
                if c.srcC == p.dst and c.passes == p.passes and c.op.split("_")[1] == p.op.split("_")[1]:
                    if n == 2: upd(2, "MFMA chain 2-pass")
                else:
                    upd(tab_c, "MFMA D->MFMA C overlap")
            elif p.dst & c.dst:
                upd(tab_c, "MFMA D->MFMA D WAW (conservative)")
        elif c.kind == "valu":
            if p.dst & (c.src | c.dst): upd(tab_valu, "MFMA D->VALU")
            if p.srcC & c.dst: upd(tab_war, "MFMA C WAR VALU")
        elif c.kind in ("ds", "vmem", "vmem_lds", "vstore"):
            if p.dst & (c.src | c.dst): upd(tab_valu, "MFMA D->mem")
    if p.kind == "salu" or p.kind == "smem":
        if ("s", 124) in p.dst and (c.kind == "vmem_lds" or "addtid" in c.op or c.op.startswith("s_movrel")): upd(1, "M0->LDS DMA")
    if p.kind == "vstore" and ("x4" in p.op or "x3" in p.op):
        data = vg(regs_of(p.ops[0])) if p.op.startswith("buffer") else vg(regs_of(p.ops[1]))
        if c.kind == "valu" and (data & c.dst): upd(2, "store data WAR VALU")
        elif data & vg(c.dst): upd(1, "store data WAR")
    return best

def check(lines, maxdist=21, verbose=True):
    ins, labels = parse(lines)
    problems = []
    for p in ins:
        if p.kind in ("nop", "branch", "ds", "vmem", "vmem_lds"): continue
        if p.kind == "salu" and ("s", 124) not in p.dst: continue
        if not p.dst and p.kind != "vstore": continue
        seen = {}
        stack = [(s, 0) for s in succs(ins, labels, p)]
        while stack:
            idx, el = stack.pop()
            if idx in seen and seen[idx] <= el: continue
            seen[idx] = el
            c = ins[idx]
            n, why = need(p, c)
            if n > el:
                problems.append((p, c, n, el, why))
            el2 = el + c.nop
            if el2 < maxdist:
                for s in succs(ins, labels, c):
                    stack.append((s, el2))
    if verbose:
        for p, c, n, el, why in problems[:60]:
            print(f"HAZARD {why}: need {n} have {el}\n    P[{p.idx}]: {p.text}\n    C[{c.idx}]: {c.text}")
        print(f"hazard check: {len(ins)} instrs, {len(problems)} problems")
    return problems
```

```python
import sys, math
from asmlib import Asm, vr, ar, sr, check

NAME = "concat_heads__mha_block__spectral_fnet__prompt"

WS_QF = 0
WS_KF = 4 << 20
WS_VF = 8 << 20
WS_OF = 12 << 20
WS_END = 64 << 20

QSCALE = (32 ** -0.5) * math.log2(math.e)

def f32bits(x):
    import struct
    return struct.unpack("<I", struct.pack("<f", x))[0]

def srd(a, base, ptr, size):
    a(f"s_mov_b32 s{base}, s{ptr}")
    a(f"s_mov_b32 s{base+1}, s{ptr+1}")
    a(f"s_mov_b32 s{base+2}, {hex(size)}")
    a(f"s_mov_b32 s{base+3}, 0x20000")

class Opt:
    STAMP = False
    EXP = set()
WS_STAMP = 48 << 20
def stamp_start(a):
    if Opt.STAMP:
        a("s_memrealtime s[96:97]")
def stamp_mid(a, i):
    if Opt.STAMP:
        a(f"s_memrealtime s[{84+2*i}:{85+2*i}]")
        a(f"s_memtime s[{76+2*i}:{77+2*i}]")
def stamp_end(a, kidx, ws_sgpr, label):
    if Opt.STAMP:
        a("s_waitcnt vmcnt(0)")
        a("s_memrealtime s[98:99]")
        a("s_waitcnt lgkmcnt(0)")
        a(f"s_mov_b32 s92, s{ws_sgpr}")
        a(f"s_mov_b32 s93, s{ws_sgpr+1}")
        a(f"s_mov_b32 s94, {hex(WS_END)}")
        a("s_mov_b32 s95, 0x20000")
        a("v_mov_b32 v8, s96")
        a("v_mov_b32 v9, s97")
        a("v_mov_b32 v10, s98")
        a("v_mov_b32 v11, s99")
        a("v_mov_b32 v4, s84")
        a("v_mov_b32 v5, s85")
        a("v_mov_b32 v6, s86")
        a("v_mov_b32 v7, s87")
        a("v_mov_b32 v14, s76")
        a("v_mov_b32 v15, s77")
        a("v_mov_b32 v16, s78")
        a("v_mov_b32 v17, s79")
        a("s_getreg_b32 s80, hwreg(HW_REG_HW_ID)")
        a("s_getreg_b32 s81, hwreg(HW_REG_XCC_ID)")
        a("v_mov_b32 v18, s80")
        a("v_mov_b32 v19, s81")
        a("v_mov_b32 v20, 0")
        a("v_mov_b32 v21, 0")
        a("s_lshl_b32 s91, s2, 6")
        a(f"s_add_u32 s91, s91, {hex(WS_STAMP + kidx*65536)}")
        a("v_mov_b32 v12, s91")
        a("v_mbcnt_lo_u32_b32 v13, -1, 0")
        a("v_mbcnt_hi_u32_b32 v13, -1, v13")
        a("v_cmp_eq_u32 vcc, 0, v13")
        a("s_and_saveexec_b64 s[88:89], vcc")
        a(f"s_cbranch_execz {label}")
        a("buffer_store_dwordx4 v[8:11], v12, s[92:95], 0 offen")
        a("buffer_store_dwordx4 v[4:7], v12, s[92:95], 0 offen offset:16")
        a("buffer_store_dwordx4 v[14:17], v12, s[92:95], 0 offen offset:32")
        a("buffer_store_dwordx4 v[18:21], v12, s[92:95], 0 offen offset:48")
        a(f"{label}:")
        a("s_mov_b64 exec, s[88:89]")

def kernel_header(a, name):
    a.raw(f".globl {name}")
    a.raw(".p2align 8")
    a.raw(f".type {name},@function")
    a.raw(f"{name}:")

def descriptor(name, vgpr, accum, sgpr=102):
    return f""".amdhsa_kernel {name}
  .amdhsa_next_free_vgpr {vgpr}
  .amdhsa_next_free_sgpr {sgpr}
  .amdhsa_accum_offset {accum}
  .amdhsa_group_segment_fixed_size 0
  .amdhsa_kernarg_size 88
  .amdhsa_user_sgpr_count 2
  .amdhsa_user_sgpr_kernarg_segment_ptr 1
  .amdhsa_system_sgpr_workgroup_id_x 1
.end_amdhsa_kernel
"""


def build(kernels, launches, path, check_hazards=True):
    hdr = open("cdna_kernels/%s.s.ref" % NAME).read().split("; Override launch geometry")[0]
    out = hdr
    for (k, g, b, lds) in launches:
        out += f"; @launch kernel={k} grid=({g},1,1) block=({b},1,1) lds={lds}\n"
    out += '.amdgcn_target "amdgcn-amd-amdhsa--gfx950"\n.text\n'
    descs = ""
    nprob = 0
    for fn, vg, acc in kernels:
        a = Asm()
        nm = fn(a)
        if check_hazards:
            nprob += len(check(a.lines))
        out += a.text()
        descs += descriptor(nm, vg, acc)
    out += '.section .rodata,"a"\n.p2align 6\n'
    out += descs
    open(path, "w").write(out)
    return nprob
WS_Z = 16 << 20
```

```python
from common import *
K1_SLOTS = 8
K1_STAGE = 20480
K1_LDS = K1_SLOTS * K1_STAGE

def gen_k1(a, store_mod=""):
    name = "k1_qkv_kernel"
    kernel_header(a, name)
    S = K1_SLOTS
    a("s_cmp_ge_u32 s2, 256")
    a("s_cbranch_scc1 K1_END")
    stamp_start(a)
    a("s_load_dwordx4 s[4:7], s[0:1], 0")
    a("s_load_dwordx2 s[8:9], s[0:1], 80")
    a("v_lshrrev_b32 v1, 6, v0")
    a("v_and_b32 v2, 63, v0")
    a("s_and_b32 s28, s2, 7")
    a("v_readfirstlane_b32 s24, v1")
    a("s_lshr_b32 s29, s2, 3")
    a("s_and_b32 s30, s29, 7")
    a("s_lshr_b32 s31, s29, 3")
    a("s_and_b32 s25, s28, 1")
    a("s_lshl_b32 s25, s25, 3")
    a("s_add_u32 s25, s25, s30")
    a("s_lshr_b32 s26, s28, 1")
    a("s_lshl_b32 s26, s26, 2")
    a("s_add_u32 s26, s26, s31")
    a("s_lshl_b32 s27, s30, 2")
    a("s_lshl_b32 s33, s31, 3")
    a("s_add_u32 s27, s27, s33")
    a("s_and_b32 s27, s27, 31")
    a("s_waitcnt lgkmcnt(0)")
    srd(a, 12, 4, 2048*1024*2)
    srd(a, 16, 6, 1024*3072*2)
    srd(a, 20, 8, WS_END)
    a("s_cmp_ge_u32 s24, 4")
    a("s_cbranch_scc1 K1_LOADER")

    ACC = 16
    XF = 112
    WF = 144
    vX0, vX1, vW = 3, 4, 5
    vXa0, vXa1, vWa = 6, 7, 8
    def acc(sb, t): return ACC + 16*(sb*3+t)
    def xf(buf, sb): return XF + buf*8 + sb*4
    def wf(buf, t): return WF + buf*12 + t*4
    a("s_and_b32 s34, s24, 1")
    a("s_lshr_b32 s35, s24, 1")
    a("v_and_b32 v9, 31, v2")
    a("s_lshl_b32 s36, s34, 6")
    a("v_add_u32 v9, s36, v9")
    a("v_lshlrev_b32 v9, 6, v9")
    a("v_lshrrev_b32 v10, 5, v2")
    a("v_bfe_u32 v11, v2, 2, 2")
    a("v_xor_b32 v10, v10, v11")
    a("v_lshlrev_b32 v10, 4, v10")
    a(f"v_add_u32 v{vX0}, v9, v10")
    a(f"v_xor_b32 v{vX1}, 32, v{vX0}")
    a("v_lshrrev_b32 v9, 5, v2")
    a("v_lshlrev_b32 v9, 3, v9")
    a("v_add_u32 v9, v9, v11")
    a("v_lshlrev_b32 v9, 7, v9")
    a("v_lshrrev_b32 v10, 1, v11")
    a("v_xor_b32 v10, s35, v10")
    a("v_lshlrev_b32 v10, 6, v10")
    a("v_add_u32 v9, v9, v10")
    a("v_bfe_u32 v10, v2, 4, 1")
    a("v_lshlrev_b32 v10, 5, v10")
    a("v_add_u32 v9, v9, v10")
    a("v_and_b32 v10, 3, v2")
    a("v_lshlrev_b32 v10, 3, v10")
    a("v_add_u32 v9, v9, v10")
    a(f"v_add_u32 v{vW}, 0x2000, v9")
    for i in range(96):
        a(f"v_mov_b32 v{ACC+i}, 0")

    def reads(bufpair, slot_sgpr):
        L = []
        for ks in range(2):
            b = bufpair*2 + ks
            va = vXa0 if ks == 0 else vXa1
            L.append(f"ds_read_b128 {vr(xf(b,0),4)}, v{va}")
            L.append(f"ds_read_b64_tr_b16 {vr(wf(b,0),2)}, v{vWa} offset:{(16*ks)*128}")
            L.append(f"ds_read_b64_tr_b16 {vr(wf(b,0)+2,2)}, v{vWa} offset:{(16*ks+4)*128}")
            L.append(f"ds_read_b128 {vr(xf(b,1),4)}, v{va} offset:2048")
            for t in (1, 2):
                L.append(f"ds_read_b64_tr_b16 {vr(wf(b,t),2)}, v{vWa} offset:{t*4096+(16*ks)*128}")
                L.append(f"ds_read_b64_tr_b16 {vr(wf(b,t)+2,2)}, v{vWa} offset:{t*4096+(16*ks+4)*128}")
        return L
    def mfmas(bufpair):
        L = []
        for ks in range(2):
            b = bufpair*2 + ks
            for t in range(3):
                for sb in range(2):
                    d = vr(acc(sb, t), 16)
                    if t < 2:
                        L.append(f"v_mfma_f32_32x32x16_bf16 {d}, {vr(wf(b,t),4)}, {vr(xf(b,sb),4)}, {d}")
                    else:
                        L.append(f"v_mfma_f32_32x32x16_bf16 {d}, {vr(xf(b,sb),4)}, {vr(wf(b,t),4)}, {d}")
        return L
    def set_addr(slot_sgpr):
        a(f"v_add_u32 v{vXa0}, {slot_sgpr}, v{vX0}")
        a(f"v_add_u32 v{vXa1}, {slot_sgpr}, v{vX1}")
        a(f"v_add_u32 v{vWa}, {slot_sgpr}, v{vW}")
    def adv_slot():
        a(f"s_add_u32 s40, s40, {K1_STAGE}")
        a(f"s_cmp_ge_u32 s40, {K1_LDS}")
        a("s_cselect_b32 s40, 0, s40")

    a("s_mov_b32 s40, 0")
    set_addr("s40")
    a("s_barrier")
    stamp_mid(a, 0)
    for r in reads(0, None): a(r)
    adv_slot()
    a("s_mov_b32 s41, 16")
    a("s_waitcnt lgkmcnt(0)")
    a.label("K1_CLOOP")
    for half in range(2):
        set_addr("s40")
        a("s_barrier")
        R = reads(1-half, None)
        M = mfmas(half)
        ri = 0
        for mi, m in enumerate(M):
            if "nomfma" not in Opt.EXP: a(m)
            n = 2 if mi < 8 else 0
            for _ in range(n):
                if "noread" not in Opt.EXP and not ("notr" in Opt.EXP and "tr_b16" in R[ri]) and not ("nob128" in Opt.EXP and "b128" in R[ri]): a(R[ri])
                ri += 1
        assert ri == 16
        adv_slot()
        if half == 1:
            a("s_sub_u32 s41, s41, 1")
            a("s_cmp_lg_u32 s41, 0")
        a("s_waitcnt lgkmcnt(0)")
    a("s_cbranch_scc1 K1_CLOOP")
    stamp_mid(a, 1)
    a("s_nop 15")
    a("v_lshlrev_b32 v9, 4, v2")
    a("s_lshl_b32 s42, s26, 1")
    a("s_add_u32 s42, s42, s35")
    a("s_lshl_b32 s42, s42, 6")
    a("s_lshl_b32 s43, s25, 2")
    a("s_lshl_b32 s44, s34, 1")
    a("s_add_u32 s42, s42, s43")
    a("s_add_u32 s42, s42, s44")
    a("s_lshl_b32 s42, s42, 11")
    a(f"s_mov_b32 s45, {hex(f32bits(QSCALE))}")
    for t in range(3):
        for sb in range(2):
            base = acc(sb, t)
            if t == 0:
                for i in range(16):
                    a(f"v_mul_f32 v{base+i}, s45, v{base+i}")
            for i in range(8):
                a(f"v_cvt_pk_bf16_f32 v{base+i}, v{base+2*i}, v{base+2*i+1}")
            reg = [WS_QF, WS_KF, WS_VF][t]
            a(f"s_add_u32 s46, s42, {hex(reg + sb*2048)}")
            a(f"buffer_store_dwordx4 {vr(base,4)}, v9, s[20:23], s46 offen{store_mod}")
            a(f"buffer_store_dwordx4 {vr(base+4,4)}, v9, s[20:23], s46 offen offset:1024{store_mod}")
    if Opt.STAMP:
        a("s_cmp_lg_u32 s24, 0")
        a("s_cbranch_scc1 K1_END")
        stamp_end(a, 0, 8, "K1_ST")
    a("s_endpgm")

    a.label("K1_LOADER")
    a("s_sub_u32 s34, s24, 4")
    a("v_lshrrev_b32 v3, 2, v2")
    a("v_lshlrev_b32 v3, 11, v3")
    a("v_and_b32 v4, 3, v2")
    a("v_bfe_u32 v5, v2, 4, 2")
    a("v_xor_b32 v4, v4, v5")
    a("v_lshlrev_b32 v4, 4, v4")
    a("v_add_u32 v3, v3, v4")
    a("v_lshrrev_b32 v6, 3, v2")
    a("v_mul_u32_u24 v6, 6144, v6")
    a("v_bfe_u32 v4, v2, 2, 1")
    a("v_bfe_u32 v5, v2, 4, 1")
    a("v_xor_b32 v4, v4, v5")
    a("v_lshlrev_b32 v4, 6, v4")
    a("v_add_u32 v6, v6, v4")
    a("v_and_b32 v4, 3, v2")
    a("v_lshlrev_b32 v4, 4, v4")
    a("v_add_u32 v6, v6, v4")
    a("s_lshl_b32 s36, s25, 18")
    a("s_lshl_b32 s37, s34, 16")
    a("s_add_u32 s36, s36, s37")
    a("s_mul_i32 s37, s34, 8*6144")
    a("s_lshl_b32 s38, s26, 7")
    a("s_add_u32 s37, s37, s38")
    a("s_lshl_b32 s38, s34, 11")
    a("s_lshl_b32 s39, s34, 10")
    a("s_add_u32 s39, s39, 0x2000")
    a("s_mov_b32 s40, 0")
    a("s_mov_b32 s41, 0")
    a.label("K1_LLOOP")
    a(f"s_cmp_lt_u32 s41, {S}")
    a("s_cbranch_scc1 K1_LISSUE")
    a(f"s_cmp_eq_u32 s41, {S}")
    a("s_cbranch_scc0 K1_LW")
    a(f"s_waitcnt vmcnt({5*(S-1)})")
    a("s_barrier")
    a.label("K1_LW")
    a(f"s_waitcnt vmcnt({5*(S-2)})")
    a("s_barrier")
    a.label("K1_LISSUE")
    a("s_lshl_b32 s42, s27, 6")
    a("s_add_u32 s42, s42, s36")
    a("s_mul_i32 s43, s27, 32*6144")
    a("s_add_u32 s43, s43, s37")
    a("s_add_u32 m0, s40, s38")
    a("s_add_u32 s44, s42, 0x8000")
    a("buffer_load_dwordx4 v3, s[12:15], s42 offen lds")
    a("s_add_u32 m0, m0, 1024")
    a("s_add_u32 s45, s43, 2048")
    a("buffer_load_dwordx4 v3, s[12:15], s44 offen lds")
    a("s_add_u32 m0, s40, s39")
    a("s_add_u32 s46, s43, 4096")
    a("buffer_load_dwordx4 v6, s[16:19], s43 offen lds")
    a("s_add_u32 m0, m0, 4096")
    a("s_add_u32 s27, s27, 1")
    a("buffer_load_dwordx4 v6, s[16:19], s45 offen lds")
    a("s_add_u32 m0, m0, 4096")
    a("s_and_b32 s27, s27, 31")
    a("buffer_load_dwordx4 v6, s[16:19], s46 offen lds")
    a(f"s_add_u32 s40, s40, {K1_STAGE}")
    a(f"s_cmp_ge_u32 s40, {K1_LDS}")
    a("s_cselect_b32 s40, 0, s40")
    a("s_add_u32 s41, s41, 1")
    a("s_cmp_lt_u32 s41, 32")
    a("s_cbranch_scc1 K1_LLOOP")
    for j in range(32-S, 32):
        n = max(0, (30 - j)) * 5
        a(f"s_waitcnt vmcnt({n})")
        a("s_barrier")
    a.label("K1_END")
    a("s_endpgm")
    return name
```

```python
from common import *
K2_LDS = 65536
K2_NATT = 256
K2_GRID = 512
BOFF = 96.0

def gen_k2(a):
    name = "k2_attn_kernel"
    kernel_header(a, name)
    global K2_GRID
    a(f"s_cmp_ge_u32 s2, {K2_GRID}")
    a("s_cbranch_scc1 K2_END")
    stamp_start(a)
    a("s_load_dwordx2 s[8:9], s[0:1], 80")
    a("v_lshrrev_b32 v1, 6, v0")
    a("v_and_b32 v2, 63, v0")
    a("v_readfirstlane_b32 s24, v1")
    if K2_GRID > K2_NATT:
        a(f"s_cmp_ge_u32 s2, {K2_NATT}")
        a("s_cbranch_scc1 K2_P1")
    Q, NEG, S0, S1, O, L, ONES = 8, 16, 32, 48, 64, 80, 84
    KB = [88, 96]; VB = [104, 112]
    vL16, vA, vB = 3, 4, 5
    a("s_and_b32 s28, s2, 7")
    a("s_lshr_b32 s29, s2, 3")
    a("s_lshr_b32 s30, s29, 3")
    a("s_lshl_b32 s28, s28, 2")
    a("s_add_u32 s25, s28, s30")
    a("s_and_b32 s26, s29, 7")
    a(f"v_lshlrev_b32 v{vL16}, 4, v2")
    a("s_waitcnt lgkmcnt(0)")
    srd(a, 20, 8, WS_END)
    a("s_lshl_b32 s30, s25, 17")
    a("s_lshl_b32 s31, s24, 10")
    a("s_add_u32 s32, s30, s31")
    a(f"s_add_u32 s32, s32, {hex(WS_KF)}")
    a("s_mov_b32 s33, s31")
    def dma_chunk():
        a("s_mov_b32 m0, s33")
        a(f"s_add_u32 s34, s32, {hex(WS_VF - WS_KF)}")
        a(f"buffer_load_dwordx4 v{vL16}, s[20:23], s32 offen lds")
        a("s_add_u32 m0, s33, 0x2000")
        a("s_add_u32 s32, s32, 0x2000")
        a(f"buffer_load_dwordx4 v{vL16}, s[20:23], s34 offen lds")
        a("s_add_u32 s33, s33, 0x4000")
        a("s_and_b32 s33, s33, 0xffff")
    dma_chunk()
    a("s_lshl_b32 s35, s26, 14")
    a("s_lshl_b32 s36, s24, 11")
    a("s_add_u32 s35, s35, s36")
    a("s_add_u32 s35, s35, s30")
    assert WS_QF == 0
    a(f"buffer_load_dwordx4 {vr(Q,4)}, v{vL16}, s[20:23], s35 offen")
    a(f"buffer_load_dwordx4 {vr(Q+4,4)}, v{vL16}, s[20:23], s35 offen offset:1024")
    dma_chunk()
    dma_chunk()
    a("v_lshrrev_b32 v6, 4, v2")
    a("v_lshrrev_b32 v7, 2, v2")
    a("v_xor_b32 v6, v6, v7")
    a("v_and_b32 v6, 1, v6")
    a("v_cmp_eq_u32 vcc, 0, v6")
    a("v_mov_b32 v7, 0x3f803f80")
    a("s_nop 0")
    for i in range(4):
        a(f"v_cndmask_b32 v{ONES+i}, 0, v7, vcc")
    for i in range(16):
        a(f"v_mov_b32 v{O+i}, 0")
    for i in range(4):
        a(f"v_mov_b32 v{L+i}, 0")
    a(f"v_mov_b32 v{vA}, v{vL16}")
    a(f"v_add_u32 v{vB}, 0x4000, v{vL16}")
    a("s_waitcnt vmcnt(4)")
    a("s_barrier")
    if "sync" not in Opt.EXP: stamp_mid(a, 0)
    def rdK(buf, base, tile):
        return [f"ds_read_b128 {vr(KB[buf],4)}, v{base} offset:{tile*2048}",
                f"ds_read_b128 {vr(KB[buf]+4,4)}, v{base} offset:{tile*2048+1024}"]
    def rdV(buf, base, tile):
        return [f"ds_read_b128 {vr(VB[buf],4)}, v{base} offset:{8192+tile*2048}",
                f"ds_read_b128 {vr(VB[buf]+4,4)}, v{base} offset:{8192+tile*2048+1024}"]
    for r in rdK(0, vA, 0) + rdK(1, vA, 1): a(r)
    for i in range(8):
        a(f"v_mov_b32 v{S1+i}, 0")
        a(f"v_mov_b32 v{VB[1]+i}, 0")
    a("s_waitcnt lgkmcnt(2)")
    a(f"v_mfma_f32_32x32x16_bf16 {vr(S0,16)}, {vr(KB[0],4)}, {vr(Q,4)}, 0")
    a(f"v_mfma_f32_32x32x16_bf16 {vr(S0,16)}, {vr(KB[0]+4,4)}, {vr(Q+4,4)}, {vr(S0,16)}")
    a("s_nop 15")
    a("s_nop 3")
    a(f"v_max3_f32 v6, v{S0}, v{S0+1}, v{S0+2}")
    for i in range(3, 15, 2):
        a(f"v_max3_f32 v6, v6, v{S0+i}, v{S0+i+1}")
    a(f"v_max_f32 v6, v6, v{S0+15}")
    a("v_mov_b32 v7, v6")
    a("s_nop 1")
    a("v_permlane32_swap_b32 v6, v7")
    a("s_nop 1")
    a("v_max_f32 v6, v6, v7")
    a(f"s_mov_b32 s37, {hex(f32bits(-BOFF))}")
    a("v_sub_f32 v6, s37, v6")
    for i in range(16):
        a(f"v_mov_b32 v{NEG+i}, v6")
    a("s_nop 1")
    a(f"v_mfma_f32_32x32x16_bf16 {vr(S0,16)}, {vr(KB[0],4)}, {vr(Q,4)}, {vr(NEG,16)}")
    a(f"v_mfma_f32_32x32x16_bf16 {vr(S0,16)}, {vr(KB[0]+4,4)}, {vr(Q+4,4)}, {vr(S0,16)}")
    a("s_mov_b32 s38, 0")
    if "half" in Opt.EXP:
        a("s_cmp_ge_u32 s24, 4")
        a("s_cbranch_scc1 K2_END")
    a("s_nop 7")
    if "sync" in Opt.EXP:
        a("s_barrier")
        stamp_mid(a, 0)
    a.label("K2_LOOP")
    SS = [S0, S1]
    def E(cur, i): a(f"v_exp_f32 v{cur+i}, v{cur+i}")
    def C(cur, k): a(f"v_cvt_pk_bf16_f32 v{cur+k}, v{cur+2*k}, v{cur+2*k+1}")
    def PV(u, vb, p): a(f"v_mfma_f32_32x32x16_bf16 {vr(O,16)}, {vr(vb+4*u,4)}, {vr(p+4*u,4)}, {vr(O,16)}")
    def LS(u, p):
        if "nols" not in Opt.EXP: a(f"v_mfma_f32_16x16x32_bf16 {vr(L,4)}, {vr(ONES,4)}, {vr(p+4*u,4)}, {vr(L,4)}")
    for j in range(4):
        cur, nxt = SS[j % 2], SS[(j+1) % 2]
        kb_use = KB[(j+1) % 2]
        kb_ld = j % 2
        vb_use = VB[(j+1) % 2]
        vb_ld = j % 2
        if j == 2 and "nobar" in Opt.EXP:
            if "nowait" not in Opt.EXP: a("s_waitcnt lgkmcnt(0)")
            a.label("K2_AFTER")
        elif j == 2:
            a("s_cmp_ge_u32 s38, 13")
            a("s_waitcnt vmcnt(2) lgkmcnt(0)")
            a("s_cbranch_scc1 K2_TAIL")
            a("s_barrier")
            dma_chunk()
            a.label("K2_AFTER")
        elif "nowait" not in Opt.EXP:
            a("s_waitcnt lgkmcnt(0)")
        kr = rdK(kb_ld, vA, j+2) if j < 2 else rdK(kb_ld, vB, j-2)
        vrd = rdV(vb_ld, vA, j)
        if "nords" in Opt.EXP: kr = ["", ""]; vrd = ["", ""]
        if "nov" in Opt.EXP: vrd = ["", ""]
        if "prio" in Opt.EXP: a("s_setprio 1")
        PV(0, vb_use, nxt)
        a(vrd[0]); a(vrd[1])
        E(cur,0); E(cur,1); E(cur,2)
        PV(1, vb_use, nxt)
        a(kr[0]); a(kr[1])
        E(cur,3); C(cur,0); E(cur,4); C(cur,1)
        LS(0, nxt)
        E(cur,5)
        LS(1, nxt)
        E(cur,6)
        a(f"v_mfma_f32_32x32x16_bf16 {vr(nxt,16)}, {vr(kb_use,4)}, {vr(Q,4)}, {vr(NEG,16)}")
        C(cur,2); E(cur,7); E(cur,8); C(cur,3)
        a(f"v_mfma_f32_32x32x16_bf16 {vr(nxt,16)}, {vr(kb_use+4,4)}, {vr(Q+4,4)}, {vr(nxt,16)}")
        if "prio" in Opt.EXP: a("s_setprio 0")
        E(cur,9); E(cur,10); C(cur,4); E(cur,11); E(cur,12); C(cur,5); E(cur,13); E(cur,14); E(cur,15)
        if j == 3:
            a(f"v_mov_b32 v{vA}, v{vB}")
            a(f"v_add_u32 v{vB}, 0x4000, v{vB}")
            a("s_add_u32 s38, s38, 1")
            a(f"v_and_b32 v{vB}, 0xffff, v{vB}")
            a("s_cmp_lt_u32 s38, 16")
        C(cur,6); C(cur,7)
    a("s_cbranch_scc1 K2_LOOP")
    a("s_waitcnt lgkmcnt(0)")
    PV(0, VB[1], S1); LS(0, S1); PV(1, VB[1], S1); LS(1, S1)
    if "sync" in Opt.EXP: a("s_barrier")
    stamp_mid(a, 1)
    a("s_nop 15")
    a("s_nop 3")
    a(f"v_mul_f32 v6, 0, v{L}")
    for i in range(16):
        a(f"v_fmac_f32 v6, 0, v{O+i}")
    a("v_cmp_neq_f32 vcc, 0, v6")
    a("s_cmp_lg_u64 vcc, 0")
    a("s_cbranch_scc1 K2_SLOW")
    a.label("K2_FIN")
    a(f"v_rcp_f32 v6, v{L}")
    a("s_nop 0")
    for i in range(16):
        a(f"v_mul_f32 v{O+i}, v{O+i}, v6")
    for i in range(8):
        a(f"v_cvt_pk_bf16_f32 v{O+i}, v{O+2*i}, v{O+2*i+1}")
    a("s_lshl_b32 s35, s26, 3")
    a("s_add_u32 s35, s35, s24")
    a("s_lshl_b32 s35, s35, 16")
    a("s_lshl_b32 s36, s25, 11")
    a("s_add_u32 s35, s35, s36")
    a(f"s_add_u32 s35, s35, {hex(WS_OF)}")
    a(f"buffer_store_dwordx4 {vr(O,4)}, v{vL16}, s[20:23], s35 offen")
    a(f"buffer_store_dwordx4 {vr(O+4,4)}, v{vL16}, s[20:23], s35 offen offset:1024")
    if Opt.STAMP:
        a(f"s_cmp_lg_u32 s24, {7 if 'sw7' in Opt.EXP else 0}")
        a("s_cbranch_scc1 K2_END")
        stamp_end(a, 1, 8, "K2_ST")
    a("s_endpgm")
    a.label("K2_TAIL")
    a("s_waitcnt vmcnt(0)")
    a("s_barrier")
    a("s_branch K2_AFTER")
    a.label("K2_SLOW")
    a(f"s_add_u32 s40, s30, {hex(WS_KF)}")
    a("s_mov_b32 s41, 0")
    a("v_mov_b32 v6, 0xff800000")
    a.label("K2_SLOW1")
    a(f"buffer_load_dwordx4 {vr(KB[0],4)}, v{vL16}, s[20:23], s40 offen")
    a(f"buffer_load_dwordx4 {vr(KB[0]+4,4)}, v{vL16}, s[20:23], s40 offen offset:1024")
    a("s_waitcnt vmcnt(0)")
    a(f"v_mfma_f32_32x32x16_bf16 {vr(S0,16)}, {vr(KB[0],4)}, {vr(Q,4)}, 0")
    a(f"v_mfma_f32_32x32x16_bf16 {vr(S0,16)}, {vr(KB[0]+4,4)}, {vr(Q+4,4)}, {vr(S0,16)}")
    a("s_nop 15")
    a("s_nop 3")
    for i in range(0, 16, 2):
        a(f"v_max3_f32 v6, v6, v{S0+i}, v{S0+i+1}")
    a("s_add_u32 s40, s40, 2048")
    a("s_add_u32 s41, s41, 1")
    a("s_cmp_lt_u32 s41, 64")
    a("s_cbranch_scc1 K2_SLOW1")
    a("v_mov_b32 v7, v6")
    a("s_nop 1")
    a("v_permlane32_swap_b32 v6, v7")
    a("s_nop 1")
    a("v_max_f32 v6, v6, v7")
    a("v_sub_f32 v6, 0, v6")
    for i in range(16):
        a(f"v_mov_b32 v{NEG+i}, v6")
        a(f"v_mov_b32 v{O+i}, 0")
    for i in range(4):
        a(f"v_mov_b32 v{L+i}, 0")
    a(f"s_add_u32 s40, s30, {hex(WS_KF)}")
    a("s_mov_b32 s41, 0")
    a.label("K2_SLOW2")
    a(f"s_add_u32 s42, s40, {hex(WS_VF - WS_KF)}")
    a(f"buffer_load_dwordx4 {vr(KB[0],4)}, v{vL16}, s[20:23], s40 offen")
    a(f"buffer_load_dwordx4 {vr(KB[0]+4,4)}, v{vL16}, s[20:23], s40 offen offset:1024")
    a(f"buffer_load_dwordx4 {vr(VB[0],4)}, v{vL16}, s[20:23], s42 offen")
    a(f"buffer_load_dwordx4 {vr(VB[0]+4,4)}, v{vL16}, s[20:23], s42 offen offset:1024")
    a("s_waitcnt vmcnt(0)")
    a(f"v_mfma_f32_32x32x16_bf16 {vr(S0,16)}, {vr(KB[0],4)}, {vr(Q,4)}, {vr(NEG,16)}")
    a(f"v_mfma_f32_32x32x16_bf16 {vr(S0,16)}, {vr(KB[0]+4,4)}, {vr(Q+4,4)}, {vr(S0,16)}")
    a("s_nop 15")
    a("s_nop 3")
    for i in range(16): a(f"v_exp_f32 v{S0+i}, v{S0+i}")
    a("s_nop 0")
    for i in range(8): a(f"v_cvt_pk_bf16_f32 v{S0+i}, v{S0+2*i}, v{S0+2*i+1}")
    a("s_nop 1")
    a(f"v_mfma_f32_32x32x16_bf16 {vr(O,16)}, {vr(VB[0],4)}, {vr(S0,4)}, {vr(O,16)}")
    a(f"v_mfma_f32_16x16x32_bf16 {vr(L,4)}, {vr(ONES,4)}, {vr(S0,4)}, {vr(L,4)}")
    a(f"v_mfma_f32_32x32x16_bf16 {vr(O,16)}, {vr(VB[0]+4,4)}, {vr(S0+4,4)}, {vr(O,16)}")
    a(f"v_mfma_f32_16x16x32_bf16 {vr(L,4)}, {vr(ONES,4)}, {vr(S0+4,4)}, {vr(L,4)}")
    a("s_add_u32 s40, s40, 2048")
    a("s_add_u32 s41, s41, 1")
    a("s_cmp_lt_u32 s41, 64")
    a("s_cbranch_scc1 K2_SLOW2")
    a("s_nop 15")
    a("s_nop 3")
    a("s_branch K2_FIN")
    if K2_GRID > K2_NATT:
        import p1
        a.label("K2_P1")
        p1.gen_p1(a)
    a.label("K2_END")
    a("s_endpgm")
    return name
```

```python
from common import *
K3_GRID = 256
K3_LDS = 131072 + 4*4096

def gen_k3(a):
    name = "k3_wo_kernel"
    kernel_header(a, name)
    a(f"s_cmp_ge_u32 s2, {K3_GRID}")
    a("s_cbranch_scc1 K3_END")
    stamp_start(a)
    a("s_load_dwordx2 s[4:5], s[0:1], 16")
    a("s_load_dwordx4 s[8:11], s[0:1], 48")
    a("s_load_dwordx2 s[6:7], s[0:1], 64")
    a("s_load_dwordx2 s[32:33], s[0:1], 80")
    a("v_lshrrev_b32 v1, 6, v0")
    a("v_and_b32 v2, 63, v0")
    a("v_readfirstlane_b32 s24, v1")
    a("s_and_b32 s28, s2, 7")
    a("s_lshr_b32 s29, s2, 3")
    a("s_lshr_b32 s30, s29, 4")
    a("s_lshl_b32 s28, s28, 1")
    a("s_add_u32 s25, s28, s30")
    a("s_and_b32 s26, s29, 15")
    a("v_lshlrev_b32 v3, 4, v2")
    a("v_lshrrev_b32 v6, 3, v2")
    a("v_lshlrev_b32 v6, 11, v6")
    a("v_bfe_u32 v4, v2, 2, 1")
    a("v_bfe_u32 v5, v2, 4, 1")
    a("v_xor_b32 v4, v4, v5")
    a("v_lshlrev_b32 v4, 6, v4")
    a("v_add_u32 v6, v6, v4")
    a("v_and_b32 v4, 3, v2")
    a("v_lshlrev_b32 v4, 4, v4")
    a("v_add_u32 v6, v6, v4")
    a("s_waitcnt lgkmcnt(0)")
    srd(a, 12, 4, 1024*1024*2)
    srd(a, 16, 6, 2048*2048*2)
    srd(a, 20, 32, WS_END)
    a("s_cmp_ge_u32 s24, 4")
    a("s_cbranch_scc1 K3_P2")
    ACC = 16; OF = 48; WF = 112
    srd(a, 52, 32, WS_END)
    for i in range(1, 4):
        a(f"v_add_u32 v{7+i}, {4096*i}, v3")
    a("v_mov_b32 v7, v3")
    a("s_lshl_b32 s34, s25, 2")
    a("s_add_u32 s34, s34, s24")
    a("s_lshl_b32 s35, s34, 16")
    a(f"s_add_u32 s35, s35, {hex(WS_OF)}")
    def oload(j):
        a(f"buffer_load_dwordx4 {vr(OF+4*j,4)}, v{7+j//4}, s[52:55], s35 offen offset:{(j%4)*1024}")
    for j in range(16): oload(j)
    a("s_add_u32 s35, s35, 0x4000")
    a("s_lshl_b32 s36, s24, 14")
    a("s_lshl_b32 s37, s26, 7")
    a("s_add_u32 s36, s36, s37")
    a("s_lshl_b32 s37, s24, 10")
    a("s_mov_b32 s38, 0")
    a.label("K3_WL")
    for u in range(4):
        a("s_mov_b32 m0, s37")
        a("s_add_u32 s37, s37, 4096")
        a("buffer_load_dwordx4 v6, s[12:15], s36 offen lds")
        a("s_add_u32 s36, s36, 0x10000")
    a("s_add_u32 s38, s38, 1")
    a("s_cmp_lt_u32 s38, 8")
    a("s_cbranch_scc1 K3_WL")
    a("v_lshrrev_b32 v11, 5, v2")
    a("v_bfe_u32 v12, v2, 2, 2")
    a("v_lshlrev_b32 v13, 2, v11")
    a("v_add_u32 v13, v13, v12")
    a("v_lshlrev_b32 v13, 7, v13")
    a("v_lshrrev_b32 v12, 1, v12")
    a("v_lshlrev_b32 v12, 6, v12")
    a("v_add_u32 v13, v13, v12")
    a("v_bfe_u32 v12, v2, 4, 1")
    a("v_lshlrev_b32 v12, 5, v12")
    a("v_add_u32 v13, v13, v12")
    a("v_and_b32 v12, 3, v2")
    a("v_lshlrev_b32 v12, 3, v12")
    a("v_add_u32 v13, v13, v12")
    a("v_xor_b32 v14, 64, v13")
    for i in range(32):
        a(f"v_mov_b32 v{ACC+i}, 0")
    def wread(j, buf):
        L = []
        for nt in range(2):
            b = WF + buf*8 + nt*4
            L.append(f"ds_read_b64_tr_b16 {vr(b,2)}, v{13+nt} offset:{j*2048}")
            L.append(f"ds_read_b64_tr_b16 {vr(b+2,2)}, v{13+nt} offset:{j*2048+1024}")
        return L
    a("s_waitcnt vmcnt(24)")
    a("s_barrier")
    stamp_mid(a, 0)
    for j in range(2):
        for r in wread(j, j): a(r)
    a("s_mov_b32 s38, 0")
    a.label("K3_LOOP")
    for j in range(16):
        buf = j % 4
        if j == 14:
            a("s_cmp_lg_u32 s38, 0")
            a("s_cbranch_scc1 K3_NOB1")
            a("s_waitcnt vmcnt(14)")
            a("s_barrier")
            a.label("K3_NOB1")
        for r in wread(j+2, (j+2) % 4): a(r)
        a("s_waitcnt vmcnt(15) lgkmcnt(8)")
        for nt in range(2):
            d = vr(ACC+16*nt, 16)
            a(f"v_mfma_f32_32x32x16_bf16 {d}, {vr(WF+buf*8+nt*4,4)}, {vr(OF+4*j,4)}, {d}")
        oload(j)
    a("s_add_u32 s35, s35, 0x4000")
    a("v_add_u32 v13, 0x8000, v13")
    a("v_add_u32 v14, 0x8000, v14")
    a("s_add_u32 s38, s38, 1")
    a("s_cmp_eq_u32 s38, 3")
    a("s_cselect_b32 s54, 0, s54")
    a("s_cmp_lt_u32 s38, 4")
    a("s_cbranch_scc1 K3_LOOP")
    stamp_mid(a, 1)
    a("s_nop 15")
    a("v_and_b32 v7, 31, v2")
    a("v_lshlrev_b32 v7, 12, v7")
    a("v_lshlrev_b32 v8, 4, v11")
    a("v_add_u32 v7, v7, v8")
    a("s_lshl_b32 s35, s34, 17")
    a("s_lshl_b32 s36, s26, 7")
    a("s_add_u32 s35, s35, s36")
    for nt in range(2):
        b = ACC + 16*nt
        for i in range(8):
            a(f"v_cvt_pk_bf16_f32 v{b+i}, v{b+2*i}, v{b+2*i+1}")
        a("s_nop 1")
        a(f"v_permlane32_swap_b32 v{b}, v{b+2}")
        a(f"v_permlane32_swap_b32 v{b+1}, v{b+3}")
        a(f"v_permlane32_swap_b32 v{b+4}, v{b+6}")
        a(f"v_permlane32_swap_b32 v{b+5}, v{b+7}")
        a("s_nop 1")
        a(f"buffer_store_dwordx4 {vr(b,4)}, v7, s[16:19], s35 offen offset:{nt*64}")
        a(f"buffer_store_dwordx4 {vr(b+4,4)}, v7, s[16:19], s35 offen offset:{nt*64+32}")
    if Opt.STAMP:
        a("s_cmp_lg_u32 s24, 0")
        a("s_cbranch_scc1 K3_END")
        stamp_end(a, 2, 32, "K3_ST")
    a("s_waitcnt vmcnt(0)")
    a("s_endpgm")

    a.label("K3_P2")
    srd(a, 36, 8, 1024*1024*2)
    srd(a, 40, 10, 1024*1024*2)
    a("s_sub_u32 s34, s24, 4")
    a("s_lshl_b32 s35, s2, 2")
    a("s_add_u32 s35, s35, s34")
    a("s_lshl_b32 s44, s34, 12")
    a("s_add_u32 s44, s44, 131072")
    FR, FI = 16, 24
    TC, TS = 32, 48
    ZA = 64
    U = 80
    T = 144
    D = 176
    def zdma():
        a("s_lshl_b32 s45, s35, 12")
        a("s_cmp_eq_u32 s35, 1024")
        a("s_cselect_b32 s45, 2048, s45")
        a(f"s_add_u32 s45, s45, {hex(WS_Z)}")
        a("s_mov_b32 m0, s44")
        a("s_add_u32 s46, s45, 2048")
        a("buffer_load_dwordx4 v3, s[20:23], s45 offen lds")
        a("buffer_load_dwordx4 v3, s[20:23], s45 offen offset:1024 lds")
        a("s_add_u32 m0, s44, 2048")
        a("s_nop 0")
        a("buffer_load_dwordx4 v3, s[20:23], s46 offen lds")
        a("buffer_load_dwordx4 v3, s[20:23], s46 offen offset:1024 lds")
    zdma()
    a("v_and_b32 v7, 31, v2")
    a("v_lshrrev_b32 v11, 5, v2")
    a("v_lshlrev_b32 v8, 16, v7")
    a("v_lshlrev_b32 v9, 3, v11")
    a("v_add_u32 v8, v8, v9")
    for ks in range(2):
        for q in range(2):
            a(f"buffer_load_dwordx2 {vr(FR+4*ks+2*q,2)}, v8, s[36:39], 0 offen offset:{32*ks+16*q}")
            a(f"buffer_load_dwordx2 {vr(FI+4*ks+2*q,2)}, v8, s[40:43], 0 offen offset:{32*ks+16*q}")
    a("v_cvt_f32_u32 v9, v7")
    a(f"v_mul_f32 v9, {hex(f32bits(1.0/1024))}, v9")
    a("v_lshlrev_b32 v10, 2, v11")
    a("v_cvt_f32_u32 v10, v10")
    a("v_mul_f32 v10, v10, v9")
    for r in range(16):
        bb = 8*(r//4) + r % 4
        a(f"s_mov_b32 s47, {hex(f32bits(float(bb)))}")
        a(f"v_fma_f32 v{TS+r}, s47, v9, v10")
    for r in range(16):
        a(f"v_cos_f32 v{TC+r}, v{TS+r}")
        a(f"v_sin_f32 v{TS+r}, -v{TS+r}")
    a("v_bfe_u32 v12, v2, 2, 2")
    a("v_lshlrev_b32 v13, 2, v11")
    a("v_add_u32 v13, v13, v12")
    a("v_lshlrev_b32 v13, 6, v13")
    a("v_bfe_u32 v12, v2, 4, 1")
    a("v_lshlrev_b32 v12, 5, v12")
    a("v_add_u32 v13, v13, v12")
    a("v_and_b32 v12, 3, v2")
    a("v_lshlrev_b32 v12, 3, v12")
    a("v_add_u32 v13, v13, v12")
    a("v_add_u32 v13, s44, v13")
    a("v_lshlrev_b32 v14, 6, v7")
    a("v_lshlrev_b32 v12, 4, v11")
    a("v_add_u32 v14, v14, v12")
    a("s_barrier")
    a("s_mov_b32 s48, 0")
    a.label("K3_P2T")
    a("s_waitcnt vmcnt(0)")
    for z in range(2):
        for ks in range(2):
            b = ZA + z*8 + ks*4
            a(f"ds_read_b64_tr_b16 {vr(b,2)}, v13 offset:{z*2048+ks*1024}")
            a(f"ds_read_b64_tr_b16 {vr(b+2,2)}, v13 offset:{z*2048+ks*1024+512}")
    a("s_and_b32 s45, s35, 1023")
    a("s_cmp_eq_u32 s45, 0")
    a("s_cselect_b32 s45, 0, -1")
    a("s_waitcnt lgkmcnt(0)")
    for i in range(8):
        a(f"v_and_b32 v{ZA+8+i}, s45, v{ZA+8+i}")
    a("s_nop 1")
    for z in range(2):
        for f, F in enumerate((FR, FI)):
            d = vr(U + (2*z+f)*16, 16)
            a(f"v_mfma_f32_32x32x16_bf16 {d}, {vr(ZA+z*8,4)}, {vr(F,4)}, 0")
            a(f"v_mfma_f32_32x32x16_bf16 {d}, {vr(ZA+z*8+4,4)}, {vr(F+4,4)}, {d}")
    a("s_nop 15")
    a("s_nop 3")
    Uar, Uai, Ubr, Ubi = U, U+16, U+32, U+48
    for r in range(16):
        c, s = TC+r, TS+r
        a(f"v_mul_f32 v4, v{Uai+r}, v{s}")
        a(f"v_mul_f32 v5, v{Uai+r}, v{c}")
        a(f"v_fma_f32 v{Uai+r}, -v{Uar+r}, v{s}, -v5")
        a(f"v_fma_f32 v{Uar+r}, v{Uar+r}, v{c}, -v4")
        a(f"v_mul_f32 v4, v{Ubi+r}, v{s}")
        a(f"v_mul_f32 v5, v{Ubi+r}, v{c}")
        a(f"v_fma_f32 v{Ubi+r}, v{Ubr+r}, v{s}, v5")
        a(f"v_fma_f32 v{Ubr+r}, v{Ubr+r}, v{c}, -v4")
    for k, src in enumerate((Uar, Uai, Ubi, Ubr)):
        for i in range(8):
            a(f"v_cvt_pk_bf16_f32 v{T+8*k+i}, v{src+2*i}, v{src+2*i+1}")
    a("s_cmp_lg_u32 s48, 0")
    a("s_cbranch_scc1 K3_P2N")
    a("s_barrier")
    a("s_mov_b32 s48, 1")
    a.label("K3_P2N")
    a("s_nop 1")
    a(f"v_mfma_f32_32x32x16_bf16 {vr(D,16)}, {vr(T,4)}, {vr(FR,4)}, 0")
    a(f"v_mfma_f32_32x32x16_bf16 {vr(D+16,16)}, {vr(T+16,4)}, {vr(FR,4)}, 0")
    a(f"v_mfma_f32_32x32x16_bf16 {vr(D,16)}, {vr(T+4,4)}, {vr(FR+4,4)}, {vr(D,16)}")
    a(f"v_mfma_f32_32x32x16_bf16 {vr(D+16,16)}, {vr(T+20,4)}, {vr(FR+4,4)}, {vr(D+16,16)}")
    a(f"v_mfma_f32_32x32x16_bf16 {vr(D,16)}, {vr(T+8,4)}, {vr(FI,4)}, {vr(D,16)}")
    a(f"v_mfma_f32_32x32x16_bf16 {vr(D+16,16)}, {vr(T+24,4)}, {vr(FI,4)}, {vr(D+16,16)}")
    a(f"v_mfma_f32_32x32x16_bf16 {vr(D,16)}, {vr(T+12,4)}, {vr(FI+4,4)}, {vr(D,16)}")
    a(f"v_mfma_f32_32x32x16_bf16 {vr(D+16,16)}, {vr(T+28,4)}, {vr(FI+4,4)}, {vr(D+16,16)}")
    a("s_lshl_b32 s45, s35, 12")
    a("s_add_u32 s45, s45, 2048")
    a("s_sub_u32 s46, 2048, s35")
    a("s_and_b32 s46, s46, 2047")
    a("s_lshl_b32 s46, s46, 12")
    a("s_add_u32 s46, s46, 2048")
    a("s_nop 15")
    a("s_nop 3")
    Y1, Y2 = U, U+16
    for r in range(16):
        a(f"v_sub_f32 v{Y1+r}, v{D+r}, v{D+16+r}")
        a(f"v_add_f32 v{Y2+r}, v{D+r}, v{D+16+r}")
    for Y, so in ((Y1, "s45"), (Y2, "s46")):
        for i in range(8):
            a(f"v_cvt_pk_bf16_f32 v{Y+i}, v{Y+2*i}, v{Y+2*i+1}")
        a("s_nop 1")
        a(f"v_permlane32_swap_b32 v{Y}, v{Y+2}")
        a(f"v_permlane32_swap_b32 v{Y+1}, v{Y+3}")
        a(f"v_permlane32_swap_b32 v{Y+4}, v{Y+6}")
        a(f"v_permlane32_swap_b32 v{Y+5}, v{Y+7}")
        a("s_nop 1")
        a(f"buffer_store_dwordx4 {vr(Y,4)}, v14, s[16:19], {so} offen")
        a(f"buffer_store_dwordx4 {vr(Y+4,4)}, v14, s[16:19], {so} offen offset:32")
    a("s_cmp_lg_u32 s35, 0")
    a("s_cbranch_scc1 K3_P2E")
    a("s_mov_b32 s35, 1024")
    zdma()
    a("s_branch K3_P2T")
    a.label("K3_P2E")
    a("s_waitcnt vmcnt(0)")
    a.label("K3_END")
    a("s_endpgm")
    return name
```

```python
from common import *
def gen_p1(a):
    a("s_load_dwordx4 s[4:7], s[0:1], 24")
    a("s_load_dwordx2 s[10:11], s[0:1], 40")
    a("s_sub_u32 s25, s2, 256")
    a("s_and_b32 s28, s25, 7")
    a("s_lshr_b32 s29, s25, 3")
    a("s_and_b32 s26, s29, 7")
    a("s_lshr_b32 s29, s29, 3")
    a("s_lshl_b32 s28, s28, 2")
    a("s_add_u32 s27, s28, s29")
    X = 32
    FR, FI = 96, 104
    GR, GI = 112, 120
    a("v_lshrrev_b32 v3, 2, v2")
    a("v_lshlrev_b32 v3, 16, v3")
    a("v_and_b32 v4, 3, v2")
    a("v_lshlrev_b32 v4, 4, v4")
    a("v_add_u32 v3, v3, v4")
    a("v_and_b32 v5, 7, v2")
    a("s_lshl_b32 s30, s26, 3")
    a("v_add_u32 v5, s30, v5")
    a("v_lshlrev_b32 v5, 17, v5")
    a("v_lshrrev_b32 v6, 4, v2")
    a("v_lshlrev_b32 v6, 4, v6")
    a("v_add_u32 v5, v5, v6")
    a("s_add_u32 s31, s30, s24")
    a("v_and_b32 v6, 15, v2")
    a("v_lshlrev_b32 v6, 6, v6")
    a("v_add_u32 v6, s31, v6")
    a("v_lshlrev_b32 v6, 12, v6")
    a("v_lshrrev_b32 v7, 5, v2")
    a("v_lshlrev_b32 v8, 4, v7")
    a("v_add_u32 v9, v6, v8")
    a("s_waitcnt lgkmcnt(0)")
    srd(a, 12, 4, 2048*1024*2)
    srd(a, 16, 6, 2048*2048*2)
    srd(a, 20, 8, WS_END)
    srd(a, 36, 10, 2048*2048*2)
    a("s_lshl_b32 s32, s24, 13")
    a("s_lshl_b32 s33, s27, 6")
    a("s_add_u32 s32, s32, s33")
    for bb in range(4):
        for i in range(4):
            a(f"s_add_u32 s33, s32, {hex(bb*2048 + i*(1<<20))}")
            a(f"buffer_load_dwordx4 {vr(X+bb*16+i*4,4)}, v3, s[12:15], s33 offen")
    for ks in range(2):
        a(f"buffer_load_dwordx4 {vr(FR+4*ks,4)}, v5, s[16:19], 0 offen offset:{64*ks}")
        a(f"buffer_load_dwordx4 {vr(FI+4*ks,4)}, v5, s[36:39], 0 offen offset:{64*ks}")
    for ks in range(2):
        a(f"buffer_load_dwordx4 {vr(GR+4*ks,4)}, v9, s[16:19], 0 offen offset:{32*ks}")
        a(f"buffer_load_dwordx4 {vr(GI+4*ks,4)}, v9, s[36:39], 0 offen offset:{32*ks}")
    STG = 32768
    a("v_lshrrev_b32 v10, 2, v2")
    a("v_lshlrev_b32 v10, 6, v10")
    a("v_and_b32 v11, 3, v2")
    a("v_lshlrev_b32 v12, 1, v7")
    a("v_xor_b32 v11, v11, v12")
    a("v_lshlrev_b32 v11, 4, v11")
    a("v_add_u32 v10, v10, v11")
    a("s_lshl_b32 s33, s24, 12")
    a(f"s_add_u32 s33, s33, {STG}")
    a("v_add_u32 v10, s33, v10")
    a("v_lshrrev_b32 v13, 4, v2")
    a("v_bfe_u32 v14, v2, 2, 2")
    a("v_lshlrev_b32 v11, 3, v13")
    a("v_add_u32 v11, v11, v14")
    a("v_lshlrev_b32 v11, 6, v11")
    a("v_and_b32 v15, 1, v13")
    a("v_lshlrev_b32 v15, 5, v15")
    a("v_add_u32 v11, v11, v15")
    a("v_and_b32 v15, 3, v2")
    a("v_lshlrev_b32 v15, 3, v15")
    a("v_add_u32 v11, v11, v15")
    a("v_add_u32 v11, s33, v11")
    a("v_xor_b32 v12, 32, v11")
    a("v_and_b32 v16, 7, v2")
    a("v_bfe_u32 v17, v2, 3, 1")
    a("v_lshlrev_b32 v18, 12, v16")
    a("v_lshlrev_b32 v17, 11, v17")
    a("v_add_u32 v18, v18, v17")
    a("v_and_b32 v17, 3, v16")
    a("v_lshlrev_b32 v17, 6, v17")
    a("v_add_u32 v18, v18, v17")
    a("v_bfe_u32 v17, v16, 2, 1")
    a("v_lshlrev_b32 v17, 5, v17")
    a("v_add_u32 v18, v18, v17")
    a("v_lshlrev_b32 v17, 3, v13")
    a("v_add_u32 v18, v18, v17")
    a("s_lshl_b32 s34, s24, 8")
    a("v_add_u32 v18, s34, v18")
    a("v_and_b32 v17, 8, v2")
    a("v_cmp_ne_u32 vcc, 0, v17")
    a("s_waitcnt vmcnt(4)")
    a("s_nop 0")
    for i in range(8):
        a(f"v_cndmask_b32 v{FR+i}, v{FR+i}, v{FI+i}, vcc")
    A = 0+20
    ACC = [28, 104]
    for bb in range(4):
        for i in range(4):
            a(f"ds_write_b128 v10, {vr(X+bb*16+i*4,4)} offset:{i*1024}")
        a("s_waitcnt lgkmcnt(0)")
        for ch in range(2):
            va = 11 + ch
            base = X + bb*16 + ch*8
            for ks in range(2):
                a(f"ds_read_b64_tr_b16 {vr(base+4*ks,2)}, v{va} offset:{ks*2048}")
                a(f"ds_read_b64_tr_b16 {vr(base+4*ks+2,2)}, v{va} offset:{ks*2048+256}")
        for ch in range(2):
            base = X + bb*16 + ch*8
            a(f"s_waitcnt lgkmcnt({4*(1-ch)})")
            a(f"v_mfma_f32_16x16x32_bf16 {vr(ACC[ch],4)}, {vr(base,4)}, {vr(FR,4)}, 0")
            a(f"v_mfma_f32_16x16x32_bf16 {vr(ACC[ch],4)}, {vr(base+4,4)}, {vr(FR+4,4)}, {vr(ACC[ch],4)}")
        a(f"v_xor_b32 v19, {bb*64}, v18")
        a("v_xor_b32 v20, 32, v19")
        a("s_nop 5")
        for ch in range(2):
            a(f"v_cvt_pk_bf16_f32 v{22+2*ch}, v{ACC[ch]}, v{ACC[ch]+1}")
            a(f"v_cvt_pk_bf16_f32 v{23+2*ch}, v{ACC[ch]+2}, v{ACC[ch]+3}")
        a("ds_write_b64 v19, v[22:23]")
        a("ds_write_b64 v20, v[24:25]")
    BU = 32
    a("v_and_b32 v17, 16, v2")
    a("v_cmp_ne_u32 vcc, 0, v17")
    a("s_mov_b32 s40, 0x80008000")
    a("s_cmp_eq_u32 s31, 0")
    a("s_cselect_b32 s42, 0x10000, 0")
    a("s_mov_b32 s43, s42")
    a("v_mov_b32 v17, 0xbf803f80")
    a("s_waitcnt vmcnt(0)")
    for i in range(8):
        a(f"v_xor_b32 v{BU+16+i}, s40, v{GI+i}")
        a(f"v_cndmask_b32 v{BU+i}, v{GR+i}, v{GI+i}, vcc")
    for i in range(8):
        a(f"v_cndmask_b32 v{BU+8+i}, v{BU+16+i}, v{GR+i}, vcc")
        a(f"v_cndmask_b32 v{BU+i}, v{BU+i}, v17, s[42:43]")
    a("s_and_b32 s33, s24, 3")
    a("v_xor_b32 v11, s33, v14")
    a("v_lshlrev_b32 v12, 3, v7")
    a("v_add_u32 v11, v11, v12")
    a("v_lshlrev_b32 v11, 6, v11")
    a("s_bfe_u32 s33, s24, 0x10002")
    a("v_bfe_u32 v12, v2, 4, 1")
    a("v_xor_b32 v12, s33, v12")
    a("v_lshlrev_b32 v12, 5, v12")
    a("v_add_u32 v11, v11, v12")
    a("v_add_u32 v11, v11, v15")
    a("s_lshl_b32 s33, s24, 12")
    a("v_add_u32 v11, s33, v11")
    a("s_waitcnt lgkmcnt(0)")
    a("s_barrier")
    UA = 64
    for ri in range(2):
        for ks in range(2):
            base = UA + ri*8 + ks*4
            a(f"ds_read_b64_tr_b16 {vr(base,2)}, v11 offset:{ri*2048+ks*1024}")
            a(f"ds_read_b64_tr_b16 {vr(base+2,2)}, v11 offset:{ri*2048+ks*1024+256}")
    D = 80
    a("v_and_b32 v12, 15, v2")
    a("v_lshlrev_b32 v12, 18, v12")
    a("v_bfe_u32 v13, v2, 4, 1")
    a("v_lshlrev_b32 v13, 11, v13")
    a("v_add_u32 v12, v12, v13")
    a("v_add_u32 v12, v12, v8")
    a("s_lshl_b32 s33, s31, 12")
    a("s_lshl_b32 s34, s27, 6")
    a("s_add_u32 s33, s33, s34")
    a(f"s_add_u32 s33, s33, {hex(WS_Z)}")
    for q in range(4):
        ri, ks = q // 2, q % 2
        a(f"s_waitcnt lgkmcnt({6-2*q})")
        c = "0" if q == 0 else vr(D,16)
        a(f"v_mfma_f32_32x32x16_bf16 {vr(D,16)}, {vr(UA+ri*8+ks*4,4)}, {vr(BU+ri*8+ks*4,4)}, {c}")
    a("s_nop 15")
    a("s_nop 3")
    for i in range(8):
        a(f"v_cvt_pk_bf16_f32 v{D+i}, v{D+2*i}, v{D+2*i+1}")
    a("s_nop 1")
    a(f"v_permlane32_swap_b32 v{D}, v{D+2}")
    a(f"v_permlane32_swap_b32 v{D+1}, v{D+3}")
    a(f"v_permlane32_swap_b32 v{D+4}, v{D+6}")
    a(f"v_permlane32_swap_b32 v{D+5}, v{D+7}")
    a("s_nop 1")
    a(f"buffer_store_dwordx4 {vr(D,4)}, v12, s[20:23], s33 offen")
    a(f"buffer_store_dwordx4 {vr(D+4,4)}, v12, s[20:23], s33 offen offset:32")
    if Opt.STAMP:
        a("s_cmp_lg_u32 s24, 0")
        a("s_cbranch_scc1 K2_END")
        stamp_mid(a, 0); stamp_mid(a, 1)
        stamp_end(a, 1, 8, "P1_ST", slot=(1, 3))
    a("s_endpgm")
```

```python
import sys
from common import *
import k1
if __name__ == "__main__":
    path = sys.argv[1]
    which = sys.argv[2]
    opts = sys.argv[3:]
    if "stamp" in opts: Opt.STAMP = True
    Opt.EXP.update(opts)
    K = {}; L = {}
    K[1] = (k1.gen_k1, 192, 192); L[1] = ("k1_qkv_kernel", 256, 512, k1.K1_LDS)
    if "2" in which:
        import k2
        K[2] = (k2.gen_k2, 128, 128); L[2] = ("k2_attn_kernel", k2.K2_GRID, 512, k2.K2_LDS)
    if "3" in which:
        import k3
        K[3] = (k3.gen_k3, 256, 256); L[3] = ("k3_wo_kernel", k3.K3_GRID, 512, k3.K3_LDS)
    ks = [int(c) for c in which]
    n = build([K[k] for k in ks], [L[k] for k in ks], path)
    sys.exit(1 if n else 0)
```

```python
import sys
from common import *
import k1
def gen_empty(a):
    kernel_header(a, "k0_empty_kernel")
    a("s_endpgm")
    return "k0_empty_kernel"
if __name__ == "__main__":
    path = sys.argv[1]
    which = sys.argv[2]
    opts = sys.argv[3:]
    if "stamp" in opts: Opt.STAMP = True
    Opt.EXP.update(opts)
    K = {}; L = {}
    K[0] = (gen_empty, 32, 32); L[0] = ("k0_empty_kernel", 256, 64, 0)
    K[1] = (k1.gen_k1, 192, 192); L[1] = ("k1_qkv_kernel", 256, 512, k1.K1_LDS)
    if "2" in which:
        import k2
        K[2] = (k2.gen_k2, 128, 128); L[2] = ("k2_attn_kernel", k2.K2_GRID, 512, k2.K2_LDS)
    if "3" in which:
        import k3
        K[3] = (k3.gen_k3, 256, 256); L[3] = ("k3_wo_kernel", k3.K3_GRID, 256, k3.K3_LDS)
    ks = [int(c) for c in which]
    uniq = sorted(set(ks))
    n = build([K[k] for k in uniq], [L[k] for k in ks], path)
    sys.exit(1 if n else 0)
```

```python
import sys, math
from asmlib import Asm, vr, ar, sr, check

NAME = "concat_heads__mha_block__spectral_fnet__prompt"

WS_QF = 0
WS_KF = 4 << 20
WS_VF = 8 << 20
WS_OF = 12 << 20
WS_END = 64 << 20

QSCALE = (32 ** -0.5) * math.log2(math.e)

def f32bits(x):
    import struct
    return struct.unpack("<I", struct.pack("<f", x))[0]

def srd(a, base, ptr, size):
    a(f"s_mov_b32 s{base}, s{ptr}")
    a(f"s_mov_b32 s{base+1}, s{ptr+1}")
    a(f"s_mov_b32 s{base+2}, {hex(size)}")
    a(f"s_mov_b32 s{base+3}, 0x20000")

class Opt:
    STAMP = False
    EXP = set()
WS_STAMP = 48 << 20
def stamp_start(a):
    if Opt.STAMP:
        a("s_memrealtime s[96:97]")
def stamp_mid(a, i):
    if Opt.STAMP:
        a(f"s_memrealtime s[{84+2*i}:{85+2*i}]")
        a(f"s_memtime s[{76+2*i}:{77+2*i}]")
def stamp_end(a, kidx, ws_sgpr, label, slot=None):
    if Opt.STAMP and "dbg" in Opt.EXP:
        lidx = kidx if slot is None else slot[0]
        sl = kidx if slot is None else slot[1]
        a("s_waitcnt vmcnt(0)")
        a("s_memrealtime s[98:99]")
        a("s_load_dwordx2 s[92:93], s[0:1], 72")
        a("s_waitcnt lgkmcnt(0)")
        a(f"s_sub_u32 s92, s92, {lidx*512}")
        a("s_subb_u32 s93, s93, 0")
        a("s_mov_b32 s94, 256")
        a("s_mov_b32 s95, 0x20000")
        a("s_not_b32 s96, s96")
        a("v_mov_b32 v8, s96")
        a("v_mov_b32 v9, s98")
        a("v_mov_b32 v10, s84")
        a("v_mov_b32 v11, s86")
        a(f"v_mov_b32 v12, {sl*16}")
        a("v_mbcnt_lo_u32_b32 v13, -1, 0")
        a("v_mbcnt_hi_u32_b32 v13, -1, v13")
        a("v_cmp_eq_u32 vcc, 0, v13")
        a("s_and_saveexec_b64 s[88:89], vcc")
        a(f"s_cbranch_execz {label}")
        a("buffer_atomic_umax v8, v12, s[92:95], 0 offen")
        a("buffer_atomic_umax v9, v12, s[92:95], 0 offen offset:4")
        a("buffer_atomic_umax v10, v12, s[92:95], 0 offen offset:8")
        a("buffer_atomic_umax v11, v12, s[92:95], 0 offen offset:12")
        a(f"{label}:")
        a("s_mov_b64 exec, s[88:89]")
    elif Opt.STAMP:
        a("s_waitcnt vmcnt(0)")
        a("s_memrealtime s[98:99]")
        a("s_waitcnt lgkmcnt(0)")
        a(f"s_mov_b32 s92, s{ws_sgpr}")
        a(f"s_mov_b32 s93, s{ws_sgpr+1}")
        a(f"s_mov_b32 s94, {hex(WS_END)}")
        a("s_mov_b32 s95, 0x20000")
        a("v_mov_b32 v8, s96")
        a("v_mov_b32 v9, s97")
        a("v_mov_b32 v10, s98")
        a("v_mov_b32 v11, s99")
        a("v_mov_b32 v4, s84")
        a("v_mov_b32 v5, s85")
        a("v_mov_b32 v6, s86")
        a("v_mov_b32 v7, s87")
        a("v_mov_b32 v14, s76")
        a("v_mov_b32 v15, s77")
        a("v_mov_b32 v16, s78")
        a("v_mov_b32 v17, s79")
        a("s_getreg_b32 s80, hwreg(HW_REG_HW_ID)")
        a("s_getreg_b32 s81, hwreg(HW_REG_XCC_ID)")
        a("v_mov_b32 v18, s80")
        a("v_mov_b32 v19, s81")
        a("v_mov_b32 v20, 0")
        a("v_mov_b32 v21, 0")
        a("s_lshl_b32 s91, s2, 6")
        a(f"s_add_u32 s91, s91, {hex(WS_STAMP + kidx*65536)}")
        a("v_mov_b32 v12, s91")
        a("v_mbcnt_lo_u32_b32 v13, -1, 0")
        a("v_mbcnt_hi_u32_b32 v13, -1, v13")
        a("v_cmp_eq_u32 vcc, 0, v13")
        a("s_and_saveexec_b64 s[88:89], vcc")
        a(f"s_cbranch_execz {label}")
        a("buffer_store_dwordx4 v[8:11], v12, s[92:95], 0 offen")
        a("buffer_store_dwordx4 v[4:7], v12, s[92:95], 0 offen offset:16")
        a("buffer_store_dwordx4 v[14:17], v12, s[92:95], 0 offen offset:32")
        a("buffer_store_dwordx4 v[18:21], v12, s[92:95], 0 offen offset:48")
        a(f"{label}:")
        a("s_mov_b64 exec, s[88:89]")

def kernel_header(a, name):
    a.raw(f".globl {name}")
    a.raw(".p2align 8")
    a.raw(f".type {name},@function")
    a.raw(f"{name}:")

def descriptor(name, vgpr, accum, sgpr=102):
    return f""".amdhsa_kernel {name}
  .amdhsa_next_free_vgpr {vgpr}
  .amdhsa_next_free_sgpr {sgpr}
  .amdhsa_accum_offset {accum}
  .amdhsa_group_segment_fixed_size 0
  .amdhsa_kernarg_size 88
  .amdhsa_user_sgpr_count 2
  .amdhsa_user_sgpr_kernarg_segment_ptr 1
  .amdhsa_system_sgpr_workgroup_id_x 1
.end_amdhsa_kernel
"""


def build(kernels, launches, path, check_hazards=True):
    hdr = open("cdna_kernels/%s.s.ref" % NAME).read().split("; Override launch geometry")[0]
    out = hdr
    for (k, g, b, lds) in launches:
        out += f"; @launch kernel={k} grid=({g},1,1) block=({b},1,1) lds={lds}\n"
    out += '.amdgcn_target "amdgcn-amd-amdhsa--gfx950"\n.text\n'
    descs = ""
    nprob = 0
    for fn, vg, acc in kernels:
        a = Asm()
        nm = fn(a)
        if check_hazards:
            nprob += len(check(a.lines))
        out += a.text()
        descs += descriptor(nm, vg, acc)
    out += '.section .rodata,"a"\n.p2align 6\n'
    out += descs
    open(path, "w").write(out)
    return nprob
WS_Z = 16 << 20
```

```python
from common import *
K1_SLOTS = 8
K1_STAGE = 20480
K1_LDS = K1_SLOTS * K1_STAGE

def gen_k1(a, store_mod=""):
    name = "k1_qkv_kernel"
    kernel_header(a, name)
    S = K1_SLOTS
    a("s_cmp_ge_u32 s2, 256")
    a("s_cbranch_scc1 K1_END")
    stamp_start(a)
    a("s_load_dwordx4 s[4:7], s[0:1], 0")
    a("s_load_dwordx2 s[8:9], s[0:1], 80")
    a("v_lshrrev_b32 v1, 6, v0")
    a("v_and_b32 v2, 63, v0")
    a("s_and_b32 s28, s2, 7")
    a("v_readfirstlane_b32 s24, v1")
    a("s_lshr_b32 s29, s2, 3")
    a("s_and_b32 s30, s29, 7")
    a("s_lshr_b32 s31, s29, 3")
    a("s_and_b32 s25, s28, 1")
    a("s_lshl_b32 s25, s25, 3")
    a("s_add_u32 s25, s25, s30")
    a("s_lshr_b32 s26, s28, 1")
    a("s_lshl_b32 s26, s26, 2")
    a("s_add_u32 s26, s26, s31")
    COOP = "nocoop" not in Opt.EXP
    if COOP:
        if "xrot0" in Opt.EXP:
            a("s_mov_b32 s27, 0")
        else:
            a("s_lshr_b32 s27, s28, 1")
            a("s_lshl_b32 s27, s27, 3")
            a("s_and_b32 s33, s28, 1")
            a("s_lshl_b32 s33, s33, 4")
            a("s_add_u32 s27, s27, s33")
            a("s_and_b32 s27, s27, 31")
    else:
        a("s_mul_i32 s27, s30, 4")
        a("s_mul_i32 s33, s31, 8")
        a("s_add_u32 s27, s27, s33")
        a("s_and_b32 s27, s27, 31")
    a("s_waitcnt lgkmcnt(0)")
    srd(a, 12, 4, 2048*1024*2)
    srd(a, 16, 6, 1024*3072*2)
    srd(a, 20, 8, WS_END)
    a("s_cmp_ge_u32 s24, 4")
    a("s_cbranch_scc1 K1_LOADER")

    ACC = 16
    XF = 112
    WF = 144
    vX0, vX1, vW = 3, 4, 5
    vXa0, vXa1, vWa = 6, 7, 8
    def acc(sb, t): return ACC + 16*(sb*3+t)
    def xf(buf, sb): return XF + buf*8 + sb*4
    def wf(buf, t): return WF + buf*12 + t*4
    a("s_and_b32 s34, s24, 1")
    a("s_lshr_b32 s35, s24, 1")
    a("v_and_b32 v9, 31, v2")
    a("s_lshl_b32 s36, s34, 6")
    a("v_add_u32 v9, s36, v9")
    a("v_lshlrev_b32 v9, 6, v9")
    a("v_lshrrev_b32 v10, 5, v2")
    a("v_bfe_u32 v11, v2, 2, 2")
    a("v_xor_b32 v10, v10, v11")
    a("v_lshlrev_b32 v10, 4, v10")
    a(f"v_add_u32 v{vX0}, v9, v10")
    a(f"v_xor_b32 v{vX1}, 32, v{vX0}")
    a("v_lshrrev_b32 v9, 5, v2")
    a("v_lshlrev_b32 v9, 3, v9")
    a("v_add_u32 v9, v9, v11")
    a("v_lshlrev_b32 v9, 7, v9")
    a("v_lshrrev_b32 v10, 1, v11")
    a("v_xor_b32 v10, s35, v10")
    a("v_lshlrev_b32 v10, 6, v10")
    a("v_add_u32 v9, v9, v10")
    a("v_bfe_u32 v10, v2, 4, 1")
    a("v_lshlrev_b32 v10, 5, v10")
    a("v_add_u32 v9, v9, v10")
    a("v_and_b32 v10, 3, v2")
    a("v_lshlrev_b32 v10, 3, v10")
    a("v_add_u32 v9, v9, v10")
    a(f"v_add_u32 v{vW}, 0x2000, v9")
    if COOP:
        a("v_and_b32 v9, 31, v2")
        a("s_and_b32 s36, s28, 1")
        a("s_lshl_b32 s36, s36, 10")
        a("s_lshl_b32 s37, s29, 5")
        a("s_add_u32 s36, s36, s37")
        a("v_add_u32 v9, s36, v9")
        a("v_lshlrev_b32 v9, 11, v9")
        a("v_lshrrev_b32 v10, 5, v2")
        a("v_lshlrev_b32 v11, 6, v10")
        a("v_add_u32 v12, v9, v11")
        a("v_and_b32 v9, 31, v2")
        a("v_min_u32 v9, 23, v9")
        a("v_lshrrev_b32 v11, 3, v9")
        a("v_lshlrev_b32 v11, 11, v11")
        a("v_and_b32 v9, 7, v9")
        a("v_lshlrev_b32 v9, 6, v9")
        a("v_add_u32 v11, v11, v9")
        a("v_mul_u32_u24 v10, 32*6144, v10")
        a("v_add_u32 v13, v11, v10")
        a("s_mul_i32 s36, s29, 6144")
        a("s_lshr_b32 s37, s28, 1")
        a("s_lshl_b32 s37, s37, 9")
        a("s_add_u32 s36, s36, s37")
        a("s_lshl_b32 s37, s24, 1")
        a("s_add_u32 s37, s37, s27")
        for m in range(4):
            a("s_and_b32 s37, s37, 31")
            a("s_lshl_b32 s38, s37, 6")
            a("s_mul_i32 s39, s37, 32*6144")
            a("s_add_u32 s39, s39, s36")
            a("buffer_load_dword v14, v12, s[12:15], s38 offen")
            a("buffer_load_dword v15, v13, s[16:19], s39 offen")
            a("s_add_u32 s37, s37, 8")
    for i in range(96):
        a(f"v_mov_b32 v{ACC+i}, 0")
    if COOP:
        a("s_waitcnt vmcnt(6)")
        a("s_barrier")

    def reads(bufpair, slot_sgpr):
        L = []
        for ks in range(2):
            b = bufpair*2 + ks
            va = vXa0 if ks == 0 else vXa1
            L.append(f"ds_read_b128 {vr(xf(b,0),4)}, v{va}")
            L.append(f"ds_read_b64_tr_b16 {vr(wf(b,0),2)}, v{vWa} offset:{(16*ks)*128}")
            L.append(f"ds_read_b64_tr_b16 {vr(wf(b,0)+2,2)}, v{vWa} offset:{(16*ks+4)*128}")
            L.append(f"ds_read_b128 {vr(xf(b,1),4)}, v{va} offset:2048")
            for t in (1, 2):
                L.append(f"ds_read_b64_tr_b16 {vr(wf(b,t),2)}, v{vWa} offset:{t*4096+(16*ks)*128}")
                L.append(f"ds_read_b64_tr_b16 {vr(wf(b,t)+2,2)}, v{vWa} offset:{t*4096+(16*ks+4)*128}")
        return L
    def mfmas(bufpair):
        L = []
        for ks in range(2):
            b = bufpair*2 + ks
            for t in range(3):
                for sb in range(2):
                    d = vr(acc(sb, t), 16)
                    if t < 2:
                        L.append(f"v_mfma_f32_32x32x16_bf16 {d}, {vr(wf(b,t),4)}, {vr(xf(b,sb),4)}, {d}")
                    else:
                        L.append(f"v_mfma_f32_32x32x16_bf16 {d}, {vr(xf(b,sb),4)}, {vr(wf(b,t),4)}, {d}")
        return L
    def set_addr(slot_sgpr):
        a(f"v_add_u32 v{vXa0}, {slot_sgpr}, v{vX0}")
        a(f"v_add_u32 v{vXa1}, {slot_sgpr}, v{vX1}")
        a(f"v_add_u32 v{vWa}, {slot_sgpr}, v{vW}")
    def adv_slot():
        a(f"s_add_u32 s40, s40, {K1_STAGE}")
        a(f"s_cmp_ge_u32 s40, {K1_LDS}")
        a("s_cselect_b32 s40, 0, s40")

    a("s_mov_b32 s40, 0")
    set_addr("s40")
    a("s_barrier")
    if "k1p" not in Opt.EXP: stamp_mid(a, 0)
    for r in reads(0, None): a(r)
    adv_slot()
    a("s_mov_b32 s41, 16")
    a("s_waitcnt lgkmcnt(0)")
    a.label("K1_CLOOP")
    for half in range(2):
        set_addr("s40")
        a("s_barrier")
        R = reads(1-half, None)
        M = mfmas(half)
        ri = 0
        for mi, m in enumerate(M):
            if "nomfma" not in Opt.EXP: a(m)
            n = 2 if mi < 8 else 0
            for _ in range(n):
                if "noread" not in Opt.EXP and not ("notr" in Opt.EXP and "tr_b16" in R[ri]) and not ("nob128" in Opt.EXP and "b128" in R[ri]): a(R[ri])
                ri += 1
        assert ri == 16
        adv_slot()
        if half == 1:
            a("s_sub_u32 s41, s41, 1")
            a("s_cmp_lg_u32 s41, 0")
        a("s_waitcnt lgkmcnt(0)")
    if "k1p" in Opt.EXP and Opt.STAMP:
        a("s_cselect_b32 s49, 1, 0")
        a("s_cmp_eq_u32 s41, 12")
        a("s_cbranch_scc0 K1_P1")
        stamp_mid(a, 0)
        a.label("K1_P1")
        a("s_cmp_eq_u32 s41, 8")
        a("s_cbranch_scc0 K1_P2")
        stamp_mid(a, 1)
        a.label("K1_P2")
        a("s_cmp_lg_u32 s49, 0")
    a("s_cbranch_scc1 K1_CLOOP")
    if "k1p" not in Opt.EXP: stamp_mid(a, 1)
    a("s_nop 15")
    a("v_lshlrev_b32 v9, 4, v2")
    a("s_lshl_b32 s42, s26, 1")
    a("s_add_u32 s42, s42, s35")
    a("s_lshl_b32 s42, s42, 6")
    a("s_lshl_b32 s43, s25, 2")
    a("s_lshl_b32 s44, s34, 1")
    a("s_add_u32 s42, s42, s43")
    a("s_add_u32 s42, s42, s44")
    a("s_lshl_b32 s42, s42, 11")
    a(f"s_mov_b32 s45, {hex(f32bits(QSCALE))}")
    for t in range(3):
        for sb in range(2):
            base = acc(sb, t)
            if t == 0:
                for i in range(16):
                    a(f"v_mul_f32 v{base+i}, s45, v{base+i}")
            for i in range(8):
                a(f"v_cvt_pk_bf16_f32 v{base+i}, v{base+2*i}, v{base+2*i+1}")
            reg = [WS_QF, WS_KF, WS_VF][t]
            a(f"s_add_u32 s46, s42, {hex(reg + sb*2048)}")
            a(f"buffer_store_dwordx4 {vr(base,4)}, v9, s[20:23], s46 offen{store_mod}")
            a(f"buffer_store_dwordx4 {vr(base+4,4)}, v9, s[20:23], s46 offen offset:1024{store_mod}")
    if Opt.STAMP:
        a("s_cmp_lg_u32 s24, 0")
        a("s_cbranch_scc1 K1_END")
        stamp_end(a, 0, 8, "K1_ST")
    a("s_endpgm")

    a.label("K1_LOADER")
    a("s_sub_u32 s34, s24, 4")
    a("v_lshrrev_b32 v3, 2, v2")
    a("v_lshlrev_b32 v3, 11, v3")
    a("v_and_b32 v4, 3, v2")
    a("v_bfe_u32 v5, v2, 4, 2")
    a("v_xor_b32 v4, v4, v5")
    a("v_lshlrev_b32 v4, 4, v4")
    a("v_add_u32 v3, v3, v4")
    a("v_lshrrev_b32 v6, 3, v2")
    a("v_mul_u32_u24 v6, 6144, v6")
    a("v_bfe_u32 v4, v2, 2, 1")
    a("v_bfe_u32 v5, v2, 4, 1")
    a("v_xor_b32 v4, v4, v5")
    a("v_lshlrev_b32 v4, 6, v4")
    a("v_add_u32 v6, v6, v4")
    a("v_and_b32 v4, 3, v2")
    a("v_lshlrev_b32 v4, 4, v4")
    a("v_add_u32 v6, v6, v4")
    a("s_lshl_b32 s36, s25, 18")
    a("s_lshl_b32 s37, s34, 16")
    a("s_add_u32 s36, s36, s37")
    a("s_mul_i32 s37, s34, 8*6144")
    a("s_lshl_b32 s38, s26, 7")
    a("s_add_u32 s37, s37, s38")
    a("s_lshl_b32 s38, s34, 11")
    a("s_lshl_b32 s39, s34, 10")
    a("s_add_u32 s39, s39, 0x2000")
    a("s_mov_b32 s40, 0")
    def issue():
        a("s_lshl_b32 s42, s27, 6")
        a("s_add_u32 s42, s42, s36")
        a("s_mul_i32 s43, s27, 32*6144")
        a("s_add_u32 s43, s43, s37")
        a("s_add_u32 m0, s40, s38")
        a("s_add_u32 s44, s42, 0x8000")
        a("buffer_load_dwordx4 v3, s[12:15], s42 offen lds")
        a("s_add_u32 m0, m0, 1024")
        a("s_add_u32 s45, s43, 2048")
        a("buffer_load_dwordx4 v3, s[12:15], s44 offen lds")
        a("s_add_u32 m0, s40, s39")
        a("s_add_u32 s46, s43, 4096")
        a("buffer_load_dwordx4 v6, s[16:19], s43 offen lds")
        a("s_add_u32 m0, m0, 4096")
        a("s_add_u32 s27, s27, 1")
        a("buffer_load_dwordx4 v6, s[16:19], s45 offen lds")
        a("s_add_u32 m0, m0, 4096")
        a("s_and_b32 s27, s27, 31")
        a("buffer_load_dwordx4 v6, s[16:19], s46 offen lds")
        a(f"s_add_u32 s40, s40, {K1_STAGE}")
        a(f"s_cmp_ge_u32 s40, {K1_LDS}")
        a("s_cselect_b32 s40, 0, s40")
    n0 = 8; step = 2
    for o in Opt.EXP:
        if o.startswith("n0_"): n0 = int(o[3:])
        if o.startswith("st_"): step = int(o[3:])
    issued = n0
    ramp = []
    j = -1
    while True:
        wait = 5 * (issued - 1 - (j + 1))
        lim = min(32, j + 1 + S) if j >= 0 else S
        lim = min(32, j + S + 1) if j >= 0 else S
        n = min(step if issued < j + S else 1, lim - issued)
        n = max(n, 0)
        if j >= 0 and issued == j + S and n == 1 and wait == 5*(S-2): break
        ramp.append((wait, n))
        issued += n
        j += 1
    jsteady = j
    print("K1 ramp", n0, step, ramp, "steady from", jsteady)
    if COOP: a("s_barrier")
    a(f"s_mov_b32 s41, {n0}")
    a.label("K1_L0")
    issue()
    a("s_sub_u32 s41, s41, 1")
    a("s_cmp_lg_u32 s41, 0")
    a("s_cbranch_scc1 K1_L0")
    for idx, (wait, n) in enumerate(ramp):
        a(f"s_waitcnt vmcnt({wait})")
        a("s_barrier")
        if n:
            if n == 1:
                issue()
            else:
                a(f"s_mov_b32 s41, {n}")
                a.label(f"K1_R{idx}")
                issue()
                a("s_sub_u32 s41, s41, 1")
                a("s_cmp_lg_u32 s41, 0")
                a(f"s_cbranch_scc1 K1_R{idx}")
    a(f"s_mov_b32 s41, {32 - S - jsteady}")
    a.label("K1_LLOOP")
    a(f"s_waitcnt vmcnt({5*(S-2)})")
    a("s_barrier")
    issue()
    a("s_sub_u32 s41, s41, 1")
    a("s_cmp_lg_u32 s41, 0")
    a("s_cbranch_scc1 K1_LLOOP")
    for j in range(32-S, 32):
        n = max(0, (30 - j)) * 5
        a(f"s_waitcnt vmcnt({n})")
        a("s_barrier")
    a.label("K1_END")
    a("s_endpgm")
    return name
```

```python
from common import *
K3_GRID = 256
K3_LDS = 131072 + 4*4096
DIST = 24

def gen_k3(a):
    name = "k3_wo_kernel"
    kernel_header(a, name)
    a(f"s_cmp_ge_u32 s2, {K3_GRID}")
    a("s_cbranch_scc1 K3_END")
    stamp_start(a)
    a("s_load_dwordx2 s[4:5], s[0:1], 16")
    a("s_load_dwordx2 s[6:7], s[0:1], 64")
    a("s_load_dwordx2 s[32:33], s[0:1], 80")
    a("v_lshrrev_b32 v1, 6, v0")
    a("v_and_b32 v2, 63, v0")
    a("v_readfirstlane_b32 s24, v1")
    a("s_and_b32 s28, s2, 7")
    a("s_lshr_b32 s29, s2, 3")
    a("s_lshr_b32 s30, s28, 1")
    a("s_lshl_b32 s30, s30, 2")
    a("s_and_b32 s31, s29, 3")
    a("s_add_u32 s25, s30, s31")
    a("s_and_b32 s30, s28, 1")
    a("s_lshl_b32 s30, s30, 3")
    a("s_lshr_b32 s31, s29, 2")
    a("s_add_u32 s26, s30, s31")
    a("v_lshlrev_b32 v3, 4, v2")
    a("v_lshrrev_b32 v6, 3, v2")
    a("v_lshlrev_b32 v6, 11, v6")
    a("v_bfe_u32 v4, v2, 2, 1")
    a("v_bfe_u32 v5, v2, 4, 1")
    a("v_xor_b32 v4, v4, v5")
    a("v_lshlrev_b32 v4, 6, v4")
    a("v_add_u32 v6, v6, v4")
    a("v_and_b32 v4, 3, v2")
    a("v_lshlrev_b32 v4, 4, v4")
    a("v_add_u32 v6, v6, v4")
    a("s_waitcnt lgkmcnt(0)")
    srd(a, 12, 4, 1024*1024*2)
    srd(a, 16, 6, 2048*2048*2)
    srd(a, 20, 32, WS_END)
    a("s_lshl_b32 s56, s24, 14")
    a("s_lshl_b32 s37, s26, 7")
    a("s_add_u32 s56, s56, s37")
    a("s_lshl_b32 s57, s24, 10")
    def wdma(n, stride):
        for u in range(n):
            a("s_mov_b32 m0, s57")
            a(f"s_add_u32 s57, s57, {stride*1024}")
            a("buffer_load_dwordx4 v6, s[12:15], s56 offen lds")
            a(f"s_add_u32 s56, s56, {hex(stride*16384)}")
    wdma(4, 8)
    a("s_cmp_ge_u32 s24, 4")
    a("s_cbranch_scc1 K3_P2")
    ACC = 16; OF = 48; WF = 176
    srd(a, 52, 32, WS_END)
    VO = 240
    for i in range(8):
        a(f"v_add_u32 v{VO+i}, {4096*i}, v3")
    a("s_lshl_b32 s34, s25, 2")
    a("s_add_u32 s34, s34, s24")
    a("s_lshl_b32 s35, s34, 16")
    a(f"s_add_u32 s35, s35, {hex(WS_OF)}")
    if "opf" in Opt.EXP:
        a("s_lshl_b32 s40, s25, 18")
        a("s_lshr_b32 s41, s29, 2")
        a("s_lshl_b32 s41, s41, 15")
        a("s_lshl_b32 s42, s24, 13")
        a("s_add_u32 s40, s40, s41")
        a("s_add_u32 s40, s40, s42")
        a(f"s_add_u32 s40, s40, {hex(WS_OF)}")
        a("v_lshlrev_b32 v4, 7, v2")
        a("buffer_load_dword v5, v4, s[20:23], s40 offen")
    def oload(slot, sreg):
        a(f"buffer_load_dwordx4 {vr(OF+4*slot,4)}, v{VO+slot//4}, s[52:55], {sreg} offen offset:{(slot%4)*1024}")
    for j in range(DIST): oload(j, "s35")
    a("s_add_u32 s39, s35, 0x8000")
    if "k3a" in Opt.EXP: stamp_mid(a, 0)
    a("v_lshrrev_b32 v11, 5, v2")
    a("v_bfe_u32 v12, v2, 2, 2")
    a("v_lshlrev_b32 v13, 2, v11")
    a("v_add_u32 v13, v13, v12")
    a("v_lshlrev_b32 v13, 7, v13")
    a("v_lshrrev_b32 v12, 1, v12")
    a("v_lshlrev_b32 v12, 6, v12")
    a("v_add_u32 v13, v13, v12")
    a("v_bfe_u32 v12, v2, 4, 1")
    a("v_lshlrev_b32 v12, 5, v12")
    a("v_add_u32 v13, v13, v12")
    a("v_and_b32 v12, 3, v2")
    a("v_lshlrev_b32 v12, 3, v12")
    a("v_add_u32 v13, v13, v12")
    a("v_xor_b32 v14, 64, v13")
    for i in range(32):
        a(f"v_mov_b32 v{ACC+i}, 0")
    def wread(j, buf):
        L = []
        for nt in range(2):
            b = WF + buf*8 + nt*4
            L.append(f"ds_read_b64_tr_b16 {vr(b,2)}, v{13+nt} offset:{j*2048}")
            L.append(f"ds_read_b64_tr_b16 {vr(b+2,2)}, v{13+nt} offset:{j*2048+1024}")
        return L
    a(f"s_waitcnt vmcnt({DIST-8})")
    if "k3a" in Opt.EXP: stamp_mid(a, 1)
    a("s_barrier")
    if not (Opt.EXP & {"k3a","k3b","k3c"}): stamp_mid(a, 0)
    LD = 4
    for j in range(LD):
        for r in wread(j, j): a(r)
    a("s_mov_b32 s38, 0")
    a.label("K3_LOOP")
    for j in range(32):
        buf = j % 8
        a(f"s_waitcnt vmcnt({DIST-1}) lgkmcnt({4*(LD-1)})")
        for nt in range(2):
            d = vr(ACC+16*nt, 16)
            if "k3nomf" not in Opt.EXP: a(f"v_mfma_f32_32x32x16_bf16 {d}, {vr(WF+buf*8+nt*4,4)}, {vr(OF+4*j,4)}, {d}")
        if j == 16 - LD or j == 32 - LD:
            a("s_cmp_lg_u32 s38, 0")
            a(f"s_cbranch_scc1 K3_NOB{j}")
            if "k3b" in Opt.EXP: stamp_mid(a, 0 if j < 16 else 1)
            a("s_barrier")
            if "k3c" in Opt.EXP: stamp_mid(a, 0 if j < 16 else 1)
            a.label(f"K3_NOB{j}")
        if j == 16:
            a("v_add_u32 v13, 0x8000, v13")
            a("v_add_u32 v14, 0x8000, v14")
        if j == 32 - DIST:
            a("s_cmp_eq_u32 s38, 1")
            a("s_cselect_b32 s54, 0, s54")
        jj = j + LD - (16 if j >= 16 else 0)
        if "k3nord" not in Opt.EXP:
            for r in wread(jj, (j+LD) % 8): a(r)
        if "k3nool" not in Opt.EXP: oload((j+DIST) % 32, "s35" if j + DIST < 32 else "s39")
    a("v_add_u32 v13, 0x8000, v13")
    a("v_add_u32 v14, 0x8000, v14")
    a("s_add_u32 s35, s35, 0x8000")
    a("s_add_u32 s39, s39, 0x8000")
    a("s_add_u32 s38, s38, 1")
    a("s_cmp_lt_u32 s38, 2")
    a("s_cbranch_scc1 K3_LOOP")
    if not (Opt.EXP & {"k3a","k3b","k3c"}): stamp_mid(a, 1)
    a("s_nop 15")
    a("v_and_b32 v7, 31, v2")
    a("v_lshlrev_b32 v7, 12, v7")
    a("v_lshlrev_b32 v8, 4, v11")
    a("v_add_u32 v7, v7, v8")
    a("s_lshl_b32 s35, s34, 17")
    a("s_lshl_b32 s36, s26, 7")
    a("s_add_u32 s35, s35, s36")
    for nt in range(2):
        b = ACC + 16*nt
        for i in range(8):
            a(f"v_cvt_pk_bf16_f32 v{b+i}, v{b+2*i}, v{b+2*i+1}")
        a("s_nop 1")
        a(f"v_permlane32_swap_b32 v{b}, v{b+2}")
        a(f"v_permlane32_swap_b32 v{b+1}, v{b+3}")
        a(f"v_permlane32_swap_b32 v{b+4}, v{b+6}")
        a(f"v_permlane32_swap_b32 v{b+5}, v{b+7}")
        a("s_nop 1")
        a(f"buffer_store_dwordx4 {vr(b,4)}, v7, s[16:19], s35 offen offset:{nt*64}")
        a(f"buffer_store_dwordx4 {vr(b+4,4)}, v7, s[16:19], s35 offen offset:{nt*64+32}")
    if Opt.STAMP:
        a("s_cmp_lg_u32 s24, 0")
        a("s_cbranch_scc1 K3_END")
        stamp_end(a, 2, 32, "K3_ST")
    a("s_waitcnt vmcnt(0)")
    a("s_endpgm")

    a.label("K3_P2")
    a("s_sub_u32 s34, s24, 4")
    a("s_lshl_b32 s35, s2, 2")
    a("s_add_u32 s35, s35, s34")
    a("s_lshl_b32 s44, s34, 12")
    a("s_add_u32 s44, s44, 131072")
    FR, FI = 16, 24
    TC, TS = 32, 48
    ZA = 64
    U = 80
    T = 144
    D = 176
    def zdma():
        a("s_lshl_b32 s45, s35, 12")
        a("s_cmp_eq_u32 s35, 1024")
        a("s_cselect_b32 s45, 2048, s45")
        a(f"s_add_u32 s45, s45, {hex(WS_Z)}")
        a("s_mov_b32 m0, s44")
        a("s_add_u32 s46, s45, 2048")
        a("buffer_load_dwordx4 v3, s[20:23], s45 offen lds")
        a("buffer_load_dwordx4 v3, s[20:23], s45 offen offset:1024 lds")
        a("s_add_u32 m0, s44, 2048")
        a("s_nop 0")
        a("buffer_load_dwordx4 v3, s[20:23], s46 offen lds")
        a("buffer_load_dwordx4 v3, s[20:23], s46 offen offset:1024 lds")
    zdma()
    a("s_lshl_b32 s56, s34, 14")
    a("s_lshl_b32 s37, s26, 7")
    a("s_add_u32 s56, s56, s37")
    a("s_add_u32 s56, s56, 0x80000")
    a("s_lshl_b32 s57, s34, 10")
    a("s_add_u32 s57, s57, 0x8000")
    wdma(8, 4)
    a("v_and_b32 v7, 31, v2")
    a("v_lshrrev_b32 v11, 5, v2")
    a("v_cvt_f32_u32 v9, v7")
    a("v_lshlrev_b32 v10, 2, v11")
    a("v_cvt_f32_u32 v10, v10")
    a(f"v_mul_f32 v4, {hex(f32bits(1.0/32))}, v9")
    a("v_mul_f32 v5, v10, v4")
    for r in range(16):
        bb = 8*(r//4) + r % 4
        a(f"s_mov_b32 s47, {hex(f32bits(float(bb)))}")
        a(f"v_fma_f32 v{U+r}, s47, v4, v5")
        a(f"v_fract_f32 v{U+r}, v{U+r}")
    for r in range(16):
        a(f"v_cos_f32 v{U+16+r}, v{U+r}")
        a(f"v_sin_f32 v{U+r}, -v{U+r}")
    a("s_nop 0")
    for i in range(8):
        a(f"v_cvt_pk_bf16_f32 v{FR+i}, v{U+16+2*i}, v{U+16+2*i+1}")
        a(f"v_cvt_pk_bf16_f32 v{FI+i}, v{U+2*i}, v{U+2*i+1}")
    a(f"v_mul_f32 v9, {hex(f32bits(1.0/1024))}, v9")
    a("v_mul_f32 v10, v10, v9")
    for r in range(16):
        bb = 8*(r//4) + r % 4
        a(f"s_mov_b32 s47, {hex(f32bits(float(bb)))}")
        a(f"v_fma_f32 v{TS+r}, s47, v9, v10")
    for r in range(16):
        a(f"v_cos_f32 v{TC+r}, v{TS+r}")
        a(f"v_sin_f32 v{TS+r}, -v{TS+r}")
    a("v_bfe_u32 v12, v2, 2, 2")
    a("v_lshlrev_b32 v13, 2, v11")
    a("v_add_u32 v13, v13, v12")
    a("v_lshlrev_b32 v13, 6, v13")
    a("v_bfe_u32 v12, v2, 4, 1")
    a("v_lshlrev_b32 v12, 5, v12")
    a("v_add_u32 v13, v13, v12")
    a("v_and_b32 v12, 3, v2")
    a("v_lshlrev_b32 v12, 3, v12")
    a("v_add_u32 v13, v13, v12")
    a("v_add_u32 v13, s44, v13")
    a("v_lshlrev_b32 v14, 6, v7")
    a("v_lshlrev_b32 v12, 4, v11")
    a("v_add_u32 v14, v14, v12")
    a("s_waitcnt vmcnt(12)")
    a("s_barrier")
    wdma(16, 4)
    a("s_waitcnt vmcnt(16)")
    a("s_barrier")
    a("s_mov_b32 s48, 0")
    a("s_branch K3_P2U")
    a.label("K3_P2T")
    a("s_waitcnt vmcnt(0)")
    a.label("K3_P2U")
    for z in range(2):
        for ks in range(2):
            b = ZA + z*8 + ks*4
            a(f"ds_read_b64_tr_b16 {vr(b,2)}, v13 offset:{z*2048+ks*1024}")
            a(f"ds_read_b64_tr_b16 {vr(b+2,2)}, v13 offset:{z*2048+ks*1024+512}")
    a("s_and_b32 s45, s35, 1023")
    a("s_cmp_eq_u32 s45, 0")
    a("s_cselect_b32 s45, 0, -1")
    a("s_waitcnt lgkmcnt(0)")
    for i in range(8):
        a(f"v_and_b32 v{ZA+8+i}, s45, v{ZA+8+i}")
    a("s_nop 1")
    for z in range(2):
        for f, F in enumerate((FR, FI)):
            d = vr(U + (2*z+f)*16, 16)
            a(f"v_mfma_f32_32x32x16_bf16 {d}, {vr(ZA+z*8,4)}, {vr(F,4)}, 0")
            a(f"v_mfma_f32_32x32x16_bf16 {d}, {vr(ZA+z*8+4,4)}, {vr(F+4,4)}, {d}")
    a("s_nop 15")
    a("s_nop 3")
    Uar, Uai, Ubr, Ubi = U, U+16, U+32, U+48
    for r in range(16):
        c, s = TC+r, TS+r
        a(f"v_mul_f32 v4, v{Uai+r}, v{s}")
        a(f"v_mul_f32 v5, v{Uai+r}, v{c}")
        a(f"v_fma_f32 v{Uai+r}, -v{Uar+r}, v{s}, -v5")
        a(f"v_fma_f32 v{Uar+r}, v{Uar+r}, v{c}, -v4")
        a(f"v_mul_f32 v4, v{Ubi+r}, v{s}")
        a(f"v_mul_f32 v5, v{Ubi+r}, v{c}")
        a(f"v_fma_f32 v{Ubi+r}, v{Ubr+r}, v{s}, v5")
        a(f"v_fma_f32 v{Ubr+r}, v{Ubr+r}, v{c}, -v4")
    for k, src in enumerate((Uar, Uai, Ubi, Ubr)):
        for i in range(8):
            a(f"v_cvt_pk_bf16_f32 v{T+8*k+i}, v{src+2*i}, v{src+2*i+1}")
    a("s_cmp_lg_u32 s48, 0")
    a("s_cbranch_scc1 K3_P2N")
    a("s_waitcnt vmcnt(0)")
    a("s_barrier")
    a("s_mov_b32 s48, 1")
    a.label("K3_P2N")
    a("s_nop 1")
    a(f"v_mfma_f32_32x32x16_bf16 {vr(D,16)}, {vr(T,4)}, {vr(FR,4)}, 0")
    a(f"v_mfma_f32_32x32x16_bf16 {vr(D+16,16)}, {vr(T+16,4)}, {vr(FR,4)}, 0")
    a(f"v_mfma_f32_32x32x16_bf16 {vr(D,16)}, {vr(T+4,4)}, {vr(FR+4,4)}, {vr(D,16)}")
    a(f"v_mfma_f32_32x32x16_bf16 {vr(D+16,16)}, {vr(T+20,4)}, {vr(FR+4,4)}, {vr(D+16,16)}")
    a(f"v_mfma_f32_32x32x16_bf16 {vr(D,16)}, {vr(T+8,4)}, {vr(FI,4)}, {vr(D,16)}")
    a(f"v_mfma_f32_32x32x16_bf16 {vr(D+16,16)}, {vr(T+24,4)}, {vr(FI,4)}, {vr(D+16,16)}")
    a(f"v_mfma_f32_32x32x16_bf16 {vr(D,16)}, {vr(T+12,4)}, {vr(FI+4,4)}, {vr(D,16)}")
    a(f"v_mfma_f32_32x32x16_bf16 {vr(D+16,16)}, {vr(T+28,4)}, {vr(FI+4,4)}, {vr(D+16,16)}")
    a("s_lshl_b32 s45, s35, 12")
    a("s_add_u32 s45, s45, 2048")
    a("s_sub_u32 s46, 2048, s35")
    a("s_and_b32 s46, s46, 2047")
    a("s_lshl_b32 s46, s46, 12")
    a("s_add_u32 s46, s46, 2048")
    a("s_nop 15")
    a("s_nop 3")
    Y1, Y2 = U, U+16
    for r in range(16):
        a(f"v_sub_f32 v{Y1+r}, v{D+r}, v{D+16+r}")
        a(f"v_add_f32 v{Y2+r}, v{D+r}, v{D+16+r}")
    for Y, so in ((Y1, "s45"), (Y2, "s46")):
        for i in range(8):
            a(f"v_cvt_pk_bf16_f32 v{Y+i}, v{Y+2*i}, v{Y+2*i+1}")
        a("s_nop 1")
        a(f"v_permlane32_swap_b32 v{Y}, v{Y+2}")
        a(f"v_permlane32_swap_b32 v{Y+1}, v{Y+3}")
        a(f"v_permlane32_swap_b32 v{Y+4}, v{Y+6}")
        a(f"v_permlane32_swap_b32 v{Y+5}, v{Y+7}")
        a("s_nop 1")
        a(f"buffer_store_dwordx4 {vr(Y,4)}, v14, s[16:19], {so} offen")
        a(f"buffer_store_dwordx4 {vr(Y+4,4)}, v14, s[16:19], {so} offen offset:32")
    a("s_cmp_lg_u32 s35, 0")
    a("s_cbranch_scc1 K3_P2E")
    a("s_mov_b32 s35, 1024")
    zdma()
    a("s_branch K3_P2T")
    a.label("K3_P2E")
    a("s_waitcnt vmcnt(0)")
    a.label("K3_END")
    a("s_endpgm")
    return name
```

```python
from common import *
def gen_p1(a):
    a("s_load_dwordx4 s[4:7], s[0:1], 24")
    a("s_load_dwordx2 s[10:11], s[0:1], 40")
    a("s_load_dwordx2 s[44:45], s[0:1], 16")
    a("s_sub_u32 s25, s2, 256")
    a("s_and_b32 s28, s25, 7")
    a("s_lshr_b32 s29, s25, 3")
    a("s_and_b32 s26, s29, 7")
    a("s_lshr_b32 s29, s29, 3")
    a("s_lshl_b32 s28, s28, 2")
    a("s_add_u32 s27, s28, s29")
    X = 32
    FR, FI = 96, 104
    GR, GI = 112, 120
    a("v_lshrrev_b32 v3, 2, v2")
    a("v_lshlrev_b32 v3, 16, v3")
    a("v_and_b32 v4, 3, v2")
    a("v_lshlrev_b32 v4, 4, v4")
    a("v_add_u32 v3, v3, v4")
    a("v_and_b32 v5, 7, v2")
    a("s_lshl_b32 s30, s26, 3")
    a("v_add_u32 v5, s30, v5")
    a("v_lshlrev_b32 v5, 17, v5")
    a("v_lshrrev_b32 v6, 4, v2")
    a("v_lshlrev_b32 v6, 4, v6")
    a("v_add_u32 v5, v5, v6")
    a("s_add_u32 s31, s30, s24")
    a("v_and_b32 v6, 15, v2")
    a("v_lshlrev_b32 v6, 6, v6")
    a("v_add_u32 v6, s31, v6")
    a("v_lshlrev_b32 v6, 12, v6")
    a("v_lshrrev_b32 v7, 5, v2")
    a("v_lshlrev_b32 v8, 4, v7")
    a("v_add_u32 v9, v6, v8")
    a("s_waitcnt lgkmcnt(0)")
    srd(a, 12, 4, 2048*1024*2)
    srd(a, 16, 6, 2048*2048*2)
    srd(a, 20, 8, WS_END)
    srd(a, 36, 10, 2048*2048*2)
    a("s_lshl_b32 s32, s24, 13")
    a("s_lshl_b32 s33, s27, 6")
    a("s_add_u32 s32, s32, s33")
    for bb in range(4):
        for i in range(4):
            a(f"s_add_u32 s33, s32, {hex(bb*2048 + i*(1<<20))}")
            a(f"buffer_load_dwordx4 {vr(X+bb*16+i*4,4)}, v3, s[12:15], s33 offen")
    for ks in range(2):
        a(f"buffer_load_dwordx4 {vr(FR+4*ks,4)}, v5, s[16:19], 0 offen offset:{64*ks}")
        a(f"buffer_load_dwordx4 {vr(FI+4*ks,4)}, v5, s[36:39], 0 offen offset:{64*ks}")
    for ks in range(2):
        a(f"buffer_load_dwordx4 {vr(GR+4*ks,4)}, v9, s[16:19], 0 offen offset:{32*ks}")
        a(f"buffer_load_dwordx4 {vr(GI+4*ks,4)}, v9, s[36:39], 0 offen offset:{32*ks}")
    if "nowopf" not in Opt.EXP:
        srd(a, 48, 44, 1024*1024*2)
        a("s_lshr_b32 s46, s25, 3")
        a("s_lshl_b32 s46, s46, 16")
        a("s_lshl_b32 s47, s24, 13")
        a("s_add_u32 s46, s46, s47")
        a("s_and_b32 s47, s25, 1")
        a("s_lshl_b32 s47, s47, 10")
        a("s_add_u32 s46, s46, s47")
        a("v_lshrrev_b32 v10, 4, v2")
        a("v_lshlrev_b32 v10, 11, v10")
        a("v_and_b32 v11, 15, v2")
        a("v_lshlrev_b32 v11, 6, v11")
        a("v_add_u32 v10, v10, v11")
        a("buffer_load_dword v27, v10, s[48:51], s46 offen")
    STG = 32768
    a("v_lshrrev_b32 v10, 2, v2")
    a("v_lshlrev_b32 v10, 6, v10")
    a("v_and_b32 v11, 3, v2")
    a("v_lshlrev_b32 v12, 1, v7")
    a("v_xor_b32 v11, v11, v12")
    a("v_lshlrev_b32 v11, 4, v11")
    a("v_add_u32 v10, v10, v11")
    a("s_lshl_b32 s33, s24, 12")
    a(f"s_add_u32 s33, s33, {STG}")
    a("v_add_u32 v10, s33, v10")
    a("v_lshrrev_b32 v13, 4, v2")
    a("v_bfe_u32 v14, v2, 2, 2")
    a("v_lshlrev_b32 v11, 3, v13")
    a("v_add_u32 v11, v11, v14")
    a("v_lshlrev_b32 v11, 6, v11")
    a("v_and_b32 v15, 1, v13")
    a("v_lshlrev_b32 v15, 5, v15")
    a("v_add_u32 v11, v11, v15")
    a("v_and_b32 v15, 3, v2")
    a("v_lshlrev_b32 v15, 3, v15")
    a("v_add_u32 v11, v11, v15")
    a("v_add_u32 v11, s33, v11")
    a("v_xor_b32 v12, 32, v11")
    a("v_and_b32 v16, 7, v2")
    a("v_bfe_u32 v17, v2, 3, 1")
    a("v_lshlrev_b32 v18, 12, v16")
    a("v_lshlrev_b32 v17, 11, v17")
    a("v_add_u32 v18, v18, v17")
    a("v_and_b32 v17, 3, v16")
    a("v_lshlrev_b32 v17, 6, v17")
    a("v_add_u32 v18, v18, v17")
    a("v_bfe_u32 v17, v16, 2, 1")
    a("v_lshlrev_b32 v17, 5, v17")
    a("v_add_u32 v18, v18, v17")
    a("v_lshlrev_b32 v17, 3, v13")
    a("v_add_u32 v18, v18, v17")
    a("s_lshl_b32 s34, s24, 8")
    a("v_add_u32 v18, s34, v18")
    a("v_and_b32 v17, 8, v2")
    a("v_cmp_ne_u32 vcc, 0, v17")
    a(f"s_waitcnt vmcnt({4 if 'nowopf' in Opt.EXP else 5})")
    a("s_nop 0")
    for i in range(8):
        a(f"v_cndmask_b32 v{FR+i}, v{FR+i}, v{FI+i}, vcc")
    A = 0+20
    ACC = [28, 104]
    for bb in range(4):
        for i in range(4):
            a(f"ds_write_b128 v10, {vr(X+bb*16+i*4,4)} offset:{i*1024}")
        a("s_waitcnt lgkmcnt(0)")
        for ch in range(2):
            va = 11 + ch
            base = X + bb*16 + ch*8
            for ks in range(2):
                a(f"ds_read_b64_tr_b16 {vr(base+4*ks,2)}, v{va} offset:{ks*2048}")
                a(f"ds_read_b64_tr_b16 {vr(base+4*ks+2,2)}, v{va} offset:{ks*2048+256}")
        for ch in range(2):
            base = X + bb*16 + ch*8
            a(f"s_waitcnt lgkmcnt({4*(1-ch)})")
            a(f"v_mfma_f32_16x16x32_bf16 {vr(ACC[ch],4)}, {vr(base,4)}, {vr(FR,4)}, 0")
            a(f"v_mfma_f32_16x16x32_bf16 {vr(ACC[ch],4)}, {vr(base+4,4)}, {vr(FR+4,4)}, {vr(ACC[ch],4)}")
        a(f"v_xor_b32 v19, {bb*64}, v18")
        a("v_xor_b32 v20, 32, v19")
        a("s_nop 5")
        for ch in range(2):
            a(f"v_cvt_pk_bf16_f32 v{22+2*ch}, v{ACC[ch]}, v{ACC[ch]+1}")
            a(f"v_cvt_pk_bf16_f32 v{23+2*ch}, v{ACC[ch]+2}, v{ACC[ch]+3}")
        a("ds_write_b64 v19, v[22:23]")
        a("ds_write_b64 v20, v[24:25]")
    BU = 32
    a("v_and_b32 v17, 16, v2")
    a("v_cmp_ne_u32 vcc, 0, v17")
    a("s_mov_b32 s40, 0x80008000")
    a("s_cmp_eq_u32 s31, 0")
    a("s_cselect_b32 s42, 0x10000, 0")
    a("s_mov_b32 s43, s42")
    a("v_mov_b32 v17, 0xbf803f80")
    a("s_waitcnt vmcnt(0)")
    for i in range(8):
        a(f"v_xor_b32 v{BU+16+i}, s40, v{GI+i}")
        a(f"v_cndmask_b32 v{BU+i}, v{GR+i}, v{GI+i}, vcc")
    for i in range(8):
        a(f"v_cndmask_b32 v{BU+8+i}, v{BU+16+i}, v{GR+i}, vcc")
        a(f"v_cndmask_b32 v{BU+i}, v{BU+i}, v17, s[42:43]")
    a("s_and_b32 s33, s24, 3")
    a("v_xor_b32 v11, s33, v14")
    a("v_lshlrev_b32 v12, 3, v7")
    a("v_add_u32 v11, v11, v12")
    a("v_lshlrev_b32 v11, 6, v11")
    a("s_bfe_u32 s33, s24, 0x10002")
    a("v_bfe_u32 v12, v2, 4, 1")
    a("v_xor_b32 v12, s33, v12")
    a("v_lshlrev_b32 v12, 5, v12")
    a("v_add_u32 v11, v11, v12")
    a("v_add_u32 v11, v11, v15")
    a("s_lshl_b32 s33, s24, 12")
    a("v_add_u32 v11, s33, v11")
    a("s_waitcnt lgkmcnt(0)")
    a("s_barrier")
    UA = 64
    for ri in range(2):
        for ks in range(2):
            base = UA + ri*8 + ks*4
            a(f"ds_read_b64_tr_b16 {vr(base,2)}, v11 offset:{ri*2048+ks*1024}")
            a(f"ds_read_b64_tr_b16 {vr(base+2,2)}, v11 offset:{ri*2048+ks*1024+256}")
    D = 80
    a("v_and_b32 v12, 15, v2")
    a("v_lshlrev_b32 v12, 18, v12")
    a("v_bfe_u32 v13, v2, 4, 1")
    a("v_lshlrev_b32 v13, 11, v13")
    a("v_add_u32 v12, v12, v13")
    a("v_add_u32 v12, v12, v8")
    a("s_lshl_b32 s33, s31, 12")
    a("s_lshl_b32 s34, s27, 6")
    a("s_add_u32 s33, s33, s34")
    a(f"s_add_u32 s33, s33, {hex(WS_Z)}")
    for q in range(4):
        ri, ks = q // 2, q % 2
        a(f"s_waitcnt lgkmcnt({6-2*q})")
        c = "0" if q == 0 else vr(D,16)
        a(f"v_mfma_f32_32x32x16_bf16 {vr(D,16)}, {vr(UA+ri*8+ks*4,4)}, {vr(BU+ri*8+ks*4,4)}, {c}")
    a("s_nop 15")
    a("s_nop 3")
    for i in range(8):
        a(f"v_cvt_pk_bf16_f32 v{D+i}, v{D+2*i}, v{D+2*i+1}")
    a("s_nop 1")
    a(f"v_permlane32_swap_b32 v{D}, v{D+2}")
    a(f"v_permlane32_swap_b32 v{D+1}, v{D+3}")
    a(f"v_permlane32_swap_b32 v{D+4}, v{D+6}")
    a(f"v_permlane32_swap_b32 v{D+5}, v{D+7}")
    a("s_nop 1")
    a(f"buffer_store_dwordx4 {vr(D,4)}, v12, s[20:23], s33 offen")
    a(f"buffer_store_dwordx4 {vr(D+4,4)}, v12, s[20:23], s33 offen offset:32")
    if Opt.STAMP:
        a("s_cmp_lg_u32 s24, 0")
        a("s_cbranch_scc1 K2_END")
        stamp_mid(a, 0); stamp_mid(a, 1)
        stamp_end(a, 1, 8, "P1_ST", slot=(1, 3))
    a("s_endpgm")
```

```python
import sys, math
from asmlib import Asm, vr, ar, sr, check

NAME = "concat_heads__mha_block__spectral_fnet__prompt"

WS_QF = 0
WS_KF = 4 << 20
WS_VF = 8 << 20
WS_KV = 4 << 20
WS_OF = 12 << 20
WS_END = 64 << 20

QSCALE = (32 ** -0.5) * math.log2(math.e)

def f32bits(x):
    import struct
    return struct.unpack("<I", struct.pack("<f", x))[0]

def srd(a, base, ptr, size):
    a(f"s_mov_b32 s{base}, s{ptr}")
    a(f"s_mov_b32 s{base+1}, s{ptr+1}")
    a(f"s_mov_b32 s{base+2}, {hex(size)}")
    a(f"s_mov_b32 s{base+3}, 0x20000")

class Opt:
    STAMP = False
    EXP = set()
WS_STAMP = 48 << 20
def smod(which):
    for o in Opt.EXP:
        if o.startswith("sm_") and which in o.split("_")[1]:
            return " " + " ".join(o.split("_")[2:])
    return ""
def stamp_start(a):
    if Opt.STAMP:
        a("s_memrealtime s[96:97]")
def stamp_mid(a, i):
    if Opt.STAMP:
        a(f"s_memrealtime s[{84+2*i}:{85+2*i}]")
        a(f"s_memtime s[{76+2*i}:{77+2*i}]")
def stamp_end(a, kidx, ws_sgpr, label, slot=None):
    if Opt.STAMP and "dbg" in Opt.EXP:
        lidx = kidx if slot is None else slot[0]
        sl = kidx if slot is None else slot[1]
        a("s_waitcnt vmcnt(0)")
        a("s_memrealtime s[98:99]")
        a("s_load_dwordx2 s[92:93], s[0:1], 72")
        a("s_waitcnt lgkmcnt(0)")
        a(f"s_sub_u32 s92, s92, {lidx*512}")
        a("s_subb_u32 s93, s93, 0")
        a("s_mov_b32 s94, 256")
        a("s_mov_b32 s95, 0x20000")
        a("s_not_b32 s96, s96")
        a("v_mov_b32 v8, s96")
        a("v_mov_b32 v9, s98")
        a("v_mov_b32 v10, s84")
        a("v_mov_b32 v11, s86")
        a(f"v_mov_b32 v12, {sl*16}")
        a("v_mbcnt_lo_u32_b32 v13, -1, 0")
        a("v_mbcnt_hi_u32_b32 v13, -1, v13")
        a("v_cmp_eq_u32 vcc, 0, v13")
        a("s_and_saveexec_b64 s[88:89], vcc")
        a(f"s_cbranch_execz {label}")
        a("buffer_atomic_umax v8, v12, s[92:95], 0 offen")
        a("buffer_atomic_umax v9, v12, s[92:95], 0 offen offset:4")
        a("buffer_atomic_umax v10, v12, s[92:95], 0 offen offset:8")
        a("buffer_atomic_umax v11, v12, s[92:95], 0 offen offset:12")
        a(f"{label}:")
        a("s_mov_b64 exec, s[88:89]")
    elif Opt.STAMP:
        a("s_waitcnt vmcnt(0)")
        a("s_memrealtime s[98:99]")
        a("s_waitcnt lgkmcnt(0)")
        a(f"s_mov_b32 s92, s{ws_sgpr}")
        a(f"s_mov_b32 s93, s{ws_sgpr+1}")
        a(f"s_mov_b32 s94, {hex(WS_END)}")
        a("s_mov_b32 s95, 0x20000")
        a("v_mov_b32 v8, s96")
        a("v_mov_b32 v9, s97")
        a("v_mov_b32 v10, s98")
        a("v_mov_b32 v11, s99")
        a("v_mov_b32 v4, s84")
        a("v_mov_b32 v5, s85")
        a("v_mov_b32 v6, s86")
        a("v_mov_b32 v7, s87")
        a("v_mov_b32 v14, s76")
        a("v_mov_b32 v15, s77")
        a("v_mov_b32 v16, s78")
        a("v_mov_b32 v17, s79")
        a("s_getreg_b32 s80, hwreg(HW_REG_HW_ID)")
        a("s_getreg_b32 s81, hwreg(HW_REG_XCC_ID)")
        a("v_mov_b32 v18, s80")
        a("v_mov_b32 v19, s81")
        a("v_mov_b32 v20, 0")
        a("v_mov_b32 v21, 0")
        a("s_lshl_b32 s91, s2, 6")
        a(f"s_add_u32 s91, s91, {hex(WS_STAMP + kidx*65536)}")
        a("v_mov_b32 v12, s91")
        a("v_mbcnt_lo_u32_b32 v13, -1, 0")
        a("v_mbcnt_hi_u32_b32 v13, -1, v13")
        a("v_cmp_eq_u32 vcc, 0, v13")
        a("s_and_saveexec_b64 s[88:89], vcc")
        a(f"s_cbranch_execz {label}")
        a("buffer_store_dwordx4 v[8:11], v12, s[92:95], 0 offen")
        a("buffer_store_dwordx4 v[4:7], v12, s[92:95], 0 offen offset:16")
        a("buffer_store_dwordx4 v[14:17], v12, s[92:95], 0 offen offset:32")
        a("buffer_store_dwordx4 v[18:21], v12, s[92:95], 0 offen offset:48")
        a(f"{label}:")
        a("s_mov_b64 exec, s[88:89]")

def kernel_header(a, name):
    a.raw(f".globl {name}")
    a.raw(".p2align 8")
    a.raw(f".type {name},@function")
    a.raw(f"{name}:")

def descriptor(name, vgpr, accum, sgpr=102):
    return f""".amdhsa_kernel {name}
  .amdhsa_next_free_vgpr {vgpr}
  .amdhsa_next_free_sgpr {sgpr}
  .amdhsa_accum_offset {accum}
  .amdhsa_group_segment_fixed_size 0
  .amdhsa_kernarg_size 88
  .amdhsa_user_sgpr_count 2
  .amdhsa_user_sgpr_kernarg_segment_ptr 1
  .amdhsa_system_sgpr_workgroup_id_x 1
.end_amdhsa_kernel
"""


def build(kernels, launches, path, check_hazards=True):
    hdr = open("cdna_kernels/%s.s.ref" % NAME).read().split("; Override launch geometry")[0]
    out = hdr
    for (k, g, b, lds) in launches:
        out += f"; @launch kernel={k} grid=({g},1,1) block=({b},1,1) lds={lds}\n"
    out += '.amdgcn_target "amdgcn-amd-amdhsa--gfx950"\n.text\n'
    descs = ""
    nprob = 0
    for fn, vg, acc in kernels:
        a = Asm()
        nm = fn(a)
        if check_hazards:
            nprob += len(check(a.lines))
        out += a.text()
        descs += descriptor(nm, vg, acc)
    out += '.section .rodata,"a"\n.p2align 6\n'
    out += descs
    open(path, "w").write(out)
    return nprob
WS_Z = 16 << 20
WS_FO = 32 << 20
WS_FZ = WS_FO + 8192
WS_TAB = WS_FO + 16384


_mx = [0]
WS_MAXE = WS_STAMP + 0x40000
def maxend(a, k, nw):
    if "maxend" not in Opt.EXP: return
    a("s_waitcnt vmcnt(0)")
    a("s_memrealtime s[70:71]")
    a(f"s_mul_i32 s72, s2, {nw}")
    a("s_add_u32 s72, s72, s24")
    a("s_lshl_b32 s72, s72, 2")
    a(f"s_add_u32 s72, s72, {hex(WS_MAXE + k*16384)}")
    a("s_waitcnt lgkmcnt(0)")
    a("v_mov_b32 v60, s70")
    a("v_mov_b32 v61, 0")
    a("buffer_store_dword v60, v61, s[20:23], s72 offen")
```

```python
from common import *
K1_SLOTS = 8
K1_STAGE = 20480
K1_LDS = K1_SLOTS * K1_STAGE

def gen_k1(a):
    store_mod = smod("q")
    name = "k1_qkv_kernel"
    kernel_header(a, name)
    S = K1_SLOTS
    a("s_cmp_ge_u32 s2, 256")
    a("s_cbranch_scc1 K1_END")
    stamp_start(a)
    a("s_load_dwordx4 s[4:7], s[0:1], 0")
    a("s_load_dwordx2 s[8:9], s[0:1], 80")
    a("v_lshrrev_b32 v1, 6, v0")
    a("v_and_b32 v2, 63, v0")
    a("s_and_b32 s28, s2, 7")
    a("v_readfirstlane_b32 s24, v1")
    a("s_lshr_b32 s29, s2, 3")
    a("s_and_b32 s30, s29, 7")
    a("s_lshr_b32 s31, s29, 3")
    a("s_and_b32 s25, s28, 1")
    a("s_lshl_b32 s25, s25, 3")
    a("s_add_u32 s25, s25, s30")
    a("s_lshr_b32 s26, s28, 1")
    a("s_lshl_b32 s26, s26, 2")
    a("s_add_u32 s26, s26, s31")
    COOP = "coop" in Opt.EXP
    RND = "rot" not in Opt.EXP and not COOP
    if RND:
        a("s_lshl_b32 s49, s31, 1")
        a("s_add_u32 s49, s49, s30")
        if "xo" in Opt.EXP:
            a("s_lshr_b32 s27, s28, 1")
            a("s_lshl_b32 s27, s27, 3")
            a("s_and_b32 s33, s28, 1")
            a("s_lshl_b32 s33, s33, 4")
            a("s_add_u32 s27, s27, s33")
            a("s_and_b32 s27, s27, 31")
        else:
            a("s_mov_b32 s27, 0")
    elif COOP:
        if "xrot0" in Opt.EXP:
            a("s_mov_b32 s27, 0")
        else:
            a("s_lshr_b32 s27, s28, 1")
            a("s_lshl_b32 s27, s27, 3")
            a("s_and_b32 s33, s28, 1")
            a("s_lshl_b32 s33, s33, 4")
            a("s_add_u32 s27, s27, s33")
            a("s_and_b32 s27, s27, 31")
    else:
        a("s_mul_i32 s27, s30, 4")
        a("s_mul_i32 s33, s31, 8")
        a("s_add_u32 s27, s27, s33")
        a("s_and_b32 s27, s27, 31")
    EARLY = "ldearly" in Opt.EXP
    def srds():
        a("s_waitcnt lgkmcnt(0)")
        srd(a, 12, 4, 2048*1024*2)
        srd(a, 16, 6, 1024*3072*2)
        srd(a, 20, 8, WS_END)
    if not EARLY: srds()
    def consumer():
        if EARLY: srds()

        if "ktab" in Opt.EXP:
            import kf
            kf.k1_table(a)
        ACC = 16
        XF = 112
        WF = 144
        vX0, vX1, vW = 3, 4, 5
        vXa0, vXa1, vWa = 6, 7, 8
        def acc(sb, t): return ACC + 16*(sb*3+t)
        def xf(buf, sb): return XF + buf*8 + sb*4
        def wf(buf, t): return WF + buf*12 + t*4
        a("s_and_b32 s34, s24, 1")
        a("s_lshr_b32 s35, s24, 1")
        a("v_and_b32 v9, 31, v2")
        a("s_lshl_b32 s36, s34, 6")
        a("v_add_u32 v9, s36, v9")
        a("v_lshlrev_b32 v9, 6, v9")
        a("v_lshrrev_b32 v10, 5, v2")
        a("v_bfe_u32 v11, v2, 2, 2")
        a("v_xor_b32 v10, v10, v11")
        a("v_lshlrev_b32 v10, 4, v10")
        a(f"v_add_u32 v{vX0}, v9, v10")
        a(f"v_xor_b32 v{vX1}, 32, v{vX0}")
        a("v_lshrrev_b32 v9, 5, v2")
        a("v_lshlrev_b32 v9, 3, v9")
        a("v_add_u32 v9, v9, v11")
        a("v_lshlrev_b32 v9, 7, v9")
        a("v_lshrrev_b32 v10, 1, v11")
        a("v_xor_b32 v10, s35, v10")
        a("v_lshlrev_b32 v10, 6, v10")
        a("v_add_u32 v9, v9, v10")
        a("v_bfe_u32 v10, v2, 4, 1")
        a("v_lshlrev_b32 v10, 5, v10")
        a("v_add_u32 v9, v9, v10")
        a("v_and_b32 v10, 3, v2")
        a("v_lshlrev_b32 v10, 3, v10")
        a("v_add_u32 v9, v9, v10")
        a(f"v_add_u32 v{vW}, 0x2000, v9")
        if COOP:
            a("v_and_b32 v9, 31, v2")
            a("s_and_b32 s36, s28, 1")
            a("s_lshl_b32 s36, s36, 10")
            a("s_lshl_b32 s37, s29, 5")
            a("s_add_u32 s36, s36, s37")
            a("v_add_u32 v9, s36, v9")
            a("v_lshlrev_b32 v9, 11, v9")
            a("v_lshrrev_b32 v10, 5, v2")
            a("v_lshlrev_b32 v11, 6, v10")
            a("v_add_u32 v12, v9, v11")
            a("v_and_b32 v9, 31, v2")
            a("v_min_u32 v9, 23, v9")
            a("v_lshrrev_b32 v11, 3, v9")
            a("v_lshlrev_b32 v11, 11, v11")
            a("v_and_b32 v9, 7, v9")
            a("v_lshlrev_b32 v9, 6, v9")
            a("v_add_u32 v11, v11, v9")
            a("v_mul_u32_u24 v10, 32*6144, v10")
            a("v_add_u32 v13, v11, v10")
            a("s_mul_i32 s36, s29, 6144")
            a("s_lshr_b32 s37, s28, 1")
            a("s_lshl_b32 s37, s37, 9")
            a("s_add_u32 s36, s36, s37")
            a("s_lshl_b32 s37, s24, 1")
            a("s_add_u32 s37, s37, s27")
            for m in range(4):
                a("s_and_b32 s37, s37, 31")
                a("s_lshl_b32 s38, s37, 6")
                a("s_mul_i32 s39, s37, 32*6144")
                a("s_add_u32 s39, s39, s36")
                a("buffer_load_dword v14, v12, s[12:15], s38 offen")
                a("buffer_load_dword v15, v13, s[16:19], s39 offen")
                a("s_add_u32 s37, s37, 8")
        for i in range(96):
            a(f"v_mov_b32 v{ACC+i}, 0")
        if "fuse" in Opt.EXP:
            a("s_cmp_lt_u32 s2, 9")
            a("s_cbranch_scc0 K1_NOZ")
            a("s_cmp_eq_u32 s24, 0")
            a("s_cbranch_scc0 K1_NOZ")
            a("v_lshlrev_b32 v9, 4, v2")
            a("s_lshl_b32 s36, s2, 10")
            a(f"s_add_u32 s36, s36, {hex(WS_FO)}")
            a(f"buffer_store_dwordx4 {vr(ACC,4)}, v9, s[20:23], s36 offen")
            a.label("K1_NOZ")
        if COOP:
            a("s_waitcnt vmcnt(6)")
            a("s_barrier")

        def reads(bufpair, slot_sgpr):
            L = []
            for ks in range(2):
                b = bufpair*2 + ks
                va = vXa0 if ks == 0 else vXa1
                L.append(f"ds_read_b128 {vr(xf(b,0),4)}, v{va}")
                L.append(f"ds_read_b64_tr_b16 {vr(wf(b,0),2)}, v{vWa} offset:{(16*ks)*128}")
                L.append(f"ds_read_b64_tr_b16 {vr(wf(b,0)+2,2)}, v{vWa} offset:{(16*ks+4)*128}")
                L.append(f"ds_read_b128 {vr(xf(b,1),4)}, v{va} offset:2048")
                for t in (1, 2):
                    L.append(f"ds_read_b64_tr_b16 {vr(wf(b,t),2)}, v{vWa} offset:{t*4096+(16*ks)*128}")
                    L.append(f"ds_read_b64_tr_b16 {vr(wf(b,t)+2,2)}, v{vWa} offset:{t*4096+(16*ks+4)*128}")
            return L
        def mfmas(bufpair):
            L = []
            for ks in range(2):
                b = bufpair*2 + ks
                for t in range(3):
                    for sb in range(2):
                        d = vr(acc(sb, t), 16)
                        if t < 2:
                            L.append(f"v_mfma_f32_32x32x16_bf16 {d}, {vr(wf(b,t),4)}, {vr(xf(b,sb),4)}, {d}")
                        else:
                            L.append(f"v_mfma_f32_32x32x16_bf16 {d}, {vr(xf(b,sb),4)}, {vr(wf(b,t),4)}, {d}")
            return L
        def set_addr(slot_sgpr):
            a(f"v_add_u32 v{vXa0}, {slot_sgpr}, v{vX0}")
            a(f"v_add_u32 v{vXa1}, {slot_sgpr}, v{vX1}")
            a(f"v_add_u32 v{vWa}, {slot_sgpr}, v{vW}")
        def adv_slot():
            a(f"s_add_u32 s40, s40, {K1_STAGE}")
            a(f"s_cmp_ge_u32 s40, {K1_LDS}")
            a("s_cselect_b32 s40, 0, s40")

        a("s_mov_b32 s40, 0")
        set_addr("s40")
        a("s_barrier")
        if "k1p" not in Opt.EXP: stamp_mid(a, 0)
        for r in reads(0, None): a(r)
        adv_slot()
        a("s_mov_b32 s41, 16")
        a("s_waitcnt lgkmcnt(0)")
        a.label("K1_CLOOP")
        for half in range(2):
            set_addr("s40")
            a("s_barrier")
            R = reads(1-half, None)
            M = mfmas(half)
            ri = 0
            for mi, m in enumerate(M):
                if "nomfma" not in Opt.EXP: a(m)
                n = 2 if mi < 8 else 0
                for _ in range(n):
                    if "noread" not in Opt.EXP and not ("notr" in Opt.EXP and "tr_b16" in R[ri]) and not ("nob128" in Opt.EXP and "b128" in R[ri]): a(R[ri])
                    ri += 1
            assert ri == 16
            adv_slot()
            if half == 1:
                a("s_sub_u32 s41, s41, 1")
                a("s_cmp_lg_u32 s41, 0")
            a("s_waitcnt lgkmcnt(0)")
        if "k1p" in Opt.EXP and Opt.STAMP:
            a("s_cselect_b32 s49, 1, 0")
            a("s_cmp_eq_u32 s41, 12")
            a("s_cbranch_scc0 K1_P1")
            stamp_mid(a, 0)
            a.label("K1_P1")
            a("s_cmp_eq_u32 s41, 8")
            a("s_cbranch_scc0 K1_P2")
            stamp_mid(a, 1)
            a.label("K1_P2")
            a("s_cmp_lg_u32 s49, 0")
        a("s_cbranch_scc1 K1_CLOOP")
        if "k1p" not in Opt.EXP: stamp_mid(a, 1)
        a("s_nop 15")
        a("v_lshlrev_b32 v9, 4, v2")
        a("s_lshl_b32 s42, s26, 1")
        a("s_add_u32 s42, s42, s35")
        a("s_lshl_b32 s42, s42, 6")
        a("s_lshl_b32 s43, s25, 2")
        a("s_lshl_b32 s44, s34, 1")
        a("s_add_u32 s42, s42, s43")
        a("s_add_u32 s42, s42, s44")
        a("s_lshl_b32 s43, s42, 12")
        a("s_lshl_b32 s42, s42, 11")
        a(f"s_mov_b32 s45, {hex(f32bits(QSCALE))}")
        for t in range(3):
            for sb in range(2):
                base = acc(sb, t)
                if t == 0:
                    for i in range(16):
                        a(f"v_mul_f32 v{base+i}, s45, v{base+i}")
                for i in range(8):
                    a(f"v_cvt_pk_bf16_f32 v{base+i}, v{base+2*i}, v{base+2*i+1}")
                if t == 0:
                    a(f"s_add_u32 s46, s42, {hex(WS_QF + sb*2048)}")
                else:
                    a(f"s_add_u32 s46, s43, {hex(WS_KV + sb*4096 + (t-1)*2048)}")
                a(f"buffer_store_dwordx4 {vr(base,4)}, v9, s[20:23], s46 offen{store_mod}")
                a(f"buffer_store_dwordx4 {vr(base+4,4)}, v9, s[20:23], s46 offen offset:1024{store_mod}")
        maxend(a, 0, 4)
        if Opt.STAMP:
            a("s_cmp_lg_u32 s24, 0")
            a("s_cbranch_scc1 K1_END")
            stamp_end(a, 0, 8, "K1_ST")
        a("s_endpgm")
    def loader():
        a.label("K1_LOADER")
        a("s_sub_u32 s34, s24, 4")
        a("v_lshrrev_b32 v3, 2, v2")
        a("v_lshlrev_b32 v3, 11, v3")
        a("v_and_b32 v4, 3, v2")
        a("v_bfe_u32 v5, v2, 4, 2")
        a("v_xor_b32 v4, v4, v5")
        a("v_lshlrev_b32 v4, 4, v4")
        a("v_add_u32 v3, v3, v4")
        if "xfull" in Opt.EXP:
            a("v_lshrrev_b32 v3, 3, v2")
            a("v_lshlrev_b32 v3, 11, v3")
            a("v_and_b32 v4, 7, v2")
            a("v_lshlrev_b32 v4, 4, v4")
            a("v_add_u32 v3, v3, v4")
        a("v_lshrrev_b32 v6, 3, v2")
        a("v_mul_u32_u24 v6, 6144, v6")
        a("v_bfe_u32 v4, v2, 2, 1")
        a("v_bfe_u32 v5, v2, 4, 1")
        a("v_xor_b32 v4, v4, v5")
        a("v_lshlrev_b32 v4, 6, v4")
        a("v_add_u32 v6, v6, v4")
        a("v_and_b32 v4, 3, v2")
        a("v_lshlrev_b32 v4, 4, v4")
        a("v_add_u32 v6, v6, v4")
        a("s_lshl_b32 s36, s25, 18")
        a("s_lshl_b32 s37, s34, 16")
        a("s_add_u32 s36, s36, s37")
        a("s_mul_i32 s37, s34, 8*6144")
        a("s_lshl_b32 s38, s26, 7")
        a("s_add_u32 s37, s37, s38")
        a("s_lshl_b32 s38, s34, 11")
        a("s_lshl_b32 s39, s34, 10")
        a("s_add_u32 s39, s39, 0x2000")
        a("s_mov_b32 s40, 0")
        if EARLY: srds()
        LS = "k1l" in Opt.EXP
        LM = "k1m" in Opt.EXP
        mst = [0]
        def mstamp():
            if not LM: return
            if mst[0] > 0:
                a("s_waitcnt lgkmcnt(0)")
                a(f"v_writelane_b32 v30, s50, {mst[0]-1}")
            a("s_memrealtime s[50:51]")
            mst[0] += 1
        if LM:
            a("v_mov_b32 v30, 0")
            a("s_waitcnt lgkmcnt(0)")
            a("v_writelane_b32 v30, s96, 63")
        lst = [0]
        def lstamp():
            if LS and lst[0] < 16:
                a(f"s_memrealtime s[{50+2*lst[0]}:{51+2*lst[0]}]")
                lst[0] += 1
        lstamp()
        def issue():
            sl = "s27"
            if RND:
                a("s_add_u32 s47, s27, s49")
                a("s_and_b32 s47, s47, 7")
                a("s_and_b32 s48, s27, 24")
                a("s_or_b32 s47, s47, s48")
                sl = "s47"
            if "xfull" in Opt.EXP:
                a(f"s_lshr_b32 s42, {sl}, 1")
                a("s_lshl_b32 s42, s42, 7")
                a(f"s_and_b32 s44, {sl}, 1")
                a("s_lshl_b32 s44, s44, 17")
                a("s_add_u32 s42, s42, s44")
                a("s_lshl_b32 s44, s25, 18")
                a("s_add_u32 s42, s42, s44")
                a("s_lshl_b32 s44, s34, 15")
                a("s_add_u32 s42, s42, s44")
            else:
                a(f"s_lshl_b32 s42, {sl}, 6")
                a("s_add_u32 s42, s42, s36")
            a(f"s_mul_i32 s43, {sl}, 32*6144")
            a("s_add_u32 s43, s43, s37")
            a("s_add_u32 m0, s40, s38")
            a(f"s_add_u32 s44, s42, {0x4000 if 'xfull' in Opt.EXP else 0x8000}")
            a("buffer_load_dwordx4 v3, s[12:15], s42 offen lds")
            a("s_add_u32 m0, m0, 1024")
            a("s_add_u32 s45, s43, 2048")
            a("buffer_load_dwordx4 v3, s[12:15], s44 offen lds")
            a("s_add_u32 m0, s40, s39")
            a("s_add_u32 s46, s43, 4096")
            a("buffer_load_dwordx4 v6, s[16:19], s43 offen lds")
            a("s_add_u32 m0, m0, 4096")
            a("s_add_u32 s27, s27, 1")
            a("buffer_load_dwordx4 v6, s[16:19], s45 offen lds")
            a("s_add_u32 m0, m0, 4096")
            a("s_and_b32 s27, s27, 31")
            a("buffer_load_dwordx4 v6, s[16:19], s46 offen lds")
            a(f"s_add_u32 s40, s40, {K1_STAGE}")
            a(f"s_cmp_ge_u32 s40, {K1_LDS}")
            a("s_cselect_b32 s40, 0, s40")
        n0 = 8; step = 2
        for o in Opt.EXP:
            if o.startswith("n0_"): n0 = int(o[3:])
            if o.startswith("st_"): step = int(o[3:])
        issued = n0
        ramp = []
        j = -1
        while True:
            wait = 5 * (issued - 1 - (j + 1))
            lim = min(32, j + 1 + S) if j >= 0 else S
            lim = min(32, j + S + 1) if j >= 0 else S
            n = min(step if issued < j + S else 1, lim - issued)
            n = max(n, 0)
            if j >= 0 and issued == j + S and n == 1 and wait == 5*(S-2): break
            ramp.append((wait, n))
            issued += n
            j += 1
        jsteady = j
        print("K1 ramp", n0, step, ramp, "steady from", jsteady)
        if COOP: a("s_barrier")
        a(f"s_mov_b32 s41, {n0}")
        a.label("K1_L0")
        issue()
        a("s_sub_u32 s41, s41, 1")
        a("s_cmp_lg_u32 s41, 0")
        a("s_cbranch_scc1 K1_L0")
        lstamp()
        for idx, (wait, n) in enumerate(ramp):
            a(f"s_waitcnt vmcnt({wait})")
            lstamp()
            a("s_barrier")
            lstamp()
            mstamp()
            if n:
                if n == 1:
                    issue()
                else:
                    a(f"s_mov_b32 s41, {n}")
                    a.label(f"K1_R{idx}")
                    issue()
                    a("s_sub_u32 s41, s41, 1")
                    a("s_cmp_lg_u32 s41, 0")
                    a(f"s_cbranch_scc1 K1_R{idx}")
        if LS:
            for q in range(5):
                a(f"s_waitcnt vmcnt({5*(S-2)})")
                lstamp()
                a("s_barrier")
                lstamp()
                issue()
            jsteady += 5
        if LM:
            for q in range(32 - S - jsteady):
                a(f"s_waitcnt vmcnt({5*(S-2)})")
                a("s_barrier")
                mstamp()
                issue()
        else:
            a(f"s_mov_b32 s41, {32 - S - jsteady}")
            a.label("K1_LLOOP")
            a(f"s_waitcnt vmcnt({5*(S-2)})")
            a("s_barrier")
            issue()
            a("s_sub_u32 s41, s41, 1")
            a("s_cmp_lg_u32 s41, 0")
            a("s_cbranch_scc1 K1_LLOOP")
        PF = "nopf" not in Opt.EXP
        if PF:
            a("s_load_dwordx2 s[50:51], s[0:1], 24")
            a("s_load_dwordx4 s[52:55], s[0:1], 32")
            a("s_cmp_ge_u32 s29, 16")
            a("s_waitcnt lgkmcnt(0)")
            a("s_cselect_b32 s52, s54, s52")
            a("s_cselect_b32 s53, s55, s53")
            a("s_cmp_lt_u32 s34, 2")
            a("s_cselect_b32 s56, s50, s52")
            a("s_cselect_b32 s57, s51, s53")
            a(f"s_mov_b32 s58, {hex(2048*1024*2)}")
            a(f"s_cselect_b32 s58, s58, {hex(2048*2048*2)}")
            a("s_mov_b32 s59, 0x20000")
            a("s_and_b32 s60, s29, 15")
            a("s_lshl_b32 s61, s29, 17")
            a("s_lshl_b32 s62, s28, 8")
            a("s_add_u32 s61, s61, s62")
            a("s_lshl_b32 s62, s34, 7")
            a("s_add_u32 s61, s61, s62")
            a("s_lshl_b32 s62, s60, 18")
            a("s_cmp_lt_u32 s34, 2")
            a("s_cselect_b32 s61, s61, s62")
            a("s_cselect_b32 s63, 11, 12")
            a("s_cmp_eq_u32 s34, 3")
            a(f"s_cselect_b32 s61, {hex(1024*4096)}, s61")
            a("s_cselect_b32 s63, 17, s63")
            a("s_cselect_b32 s60, 31, 63")
            a("v_and_b32 v8, s60, v2")
            a("v_lshlrev_b32 v8, s63, v8")
            a("buffer_load_dword v9, v8, s[56:59], s61 offen")
        WPF = "k1wpf" in Opt.EXP
        if WPF:
            a("s_load_dwordx2 s[50:51], s[0:1], 16")
            a("s_lshl_b32 s60, s29, 2")
            a("s_add_u32 s60, s60, s34")
            a("s_lshl_b32 s60, s60, 14")
            a("s_and_b32 s61, s28, 1")
            a("s_lshl_b32 s61, s61, 10")
            a("s_add_u32 s60, s60, s61")
            a("v_lshrrev_b32 v8, 3, v2")
            a("v_lshlrev_b32 v8, 11, v8")
            a("v_and_b32 v10, 7, v2")
            a("v_lshlrev_b32 v10, 7, v10")
            a("v_add_u32 v8, v8, v10")
            a("s_waitcnt lgkmcnt(0)")
            srd(a, 56, 50, 1024*1024*2)
            a("buffer_load_dword v9, v8, s[56:59], s60 offen")
        for j in range(32-S, 32):
            n = max(0, (30 - j)) * 5 + (1 if PF else 0) + (1 if WPF else 0)
            a(f"s_waitcnt vmcnt({n})")
            a("s_barrier")
            mstamp()
        if LM:
            mstamp()
            a("s_lshl_b32 s91, s2, 10")
            a("s_lshl_b32 s92, s34, 8")
            a("s_add_u32 s91, s91, s92")
            a(f"s_add_u32 s91, s91, {hex(WS_STAMP + 65536)}")
            a("v_lshlrev_b32 v12, 2, v2")
            a("buffer_store_dword v30, v12, s[20:23], s91 offen")
        if LS:
            a("s_getreg_b32 s49, hwreg(HW_REG_XCC_ID)")
            a("s_waitcnt lgkmcnt(0)")
            a("v_mov_b32 v20, s96")
            for i in range(15):
                a(f"v_mov_b32 v{21+i}, s{50+2*i}")
            a("s_lshl_b32 s91, s2, 8")
            a("s_lshl_b32 s92, s34, 6")
            a("s_add_u32 s91, s91, s92")
            a(f"s_add_u32 s91, s91, {hex(WS_STAMP + 65536)}")
            a("v_mov_b32 v12, s91")
            a("v_cmp_eq_u32 vcc, 0, v2")
            a("s_and_saveexec_b64 s[88:89], vcc")
            a("s_cbranch_execz K1_END")
            for i in range(4):
                a(f"buffer_store_dwordx4 {vr(20+4*i,4)}, v12, s[20:23], 0 offen offset:{16*i}")
    if "ldfirst" in Opt.EXP:
        a("s_cmp_lt_u32 s24, 4")
        a("s_cbranch_scc1 K1_CONS")
        loader()
        a("s_endpgm")
        a.label("K1_CONS")
        consumer()
    else:
        a("s_cmp_ge_u32 s24, 4")
        a("s_cbranch_scc1 K1_LOADER")
        consumer()
        loader()
    a.label("K1_END")
    a("s_endpgm")
    return name
```

```python
from common import *
K2_LDS = 81920
K2_NATT = 256
K2_GRID = 512
BOFF = 96.0

def gen_k2(a):
    name = "k2_attn_kernel"
    kernel_header(a, name)
    global K2_GRID
    a(f"s_cmp_ge_u32 s2, {K2_GRID}")
    a("s_cbranch_scc1 K2_END")
    stamp_start(a)
    if "fst" in Opt.EXP: a("s_memrealtime s[96:97]")
    a("s_load_dwordx2 s[8:9], s[0:1], 80")
    a("v_lshrrev_b32 v1, 6, v0")
    a("v_and_b32 v2, 63, v0")
    a("v_readfirstlane_b32 s24, v1")
    if K2_GRID > K2_NATT:
        a(f"s_cmp_ge_u32 s2, {K2_NATT}")
        a("s_cbranch_scc1 K2_P1")
    Q, NEG, S0, S1, O, L, ONES = 8, 16, 32, 48, 64, 80, 84
    KB = [88, 96]; VB = [104, 112]
    vL16, vHi = 3, 4
    NSLOT = 20
    a("s_and_b32 s28, s2, 7")
    a("s_lshr_b32 s29, s2, 3")
    a("s_lshr_b32 s30, s29, 3")
    if "hmap" in Opt.EXP:
        a("s_lshl_b32 s25, s30, 1")
        a("s_lshr_b32 s31, s28, 2")
        a("s_add_u32 s25, s25, s31")
        a("s_lshl_b32 s25, s25, 2")
        a("s_and_b32 s28, s28, 3")
        a("s_add_u32 s25, s25, s28")
    else:
        a("s_lshl_b32 s28, s28, 2")
        a("s_add_u32 s25, s28, s30")
    a("s_and_b32 s26, s29, 7")
    a(f"v_lshlrev_b32 v{vL16}, 4, v2")
    a("s_lshl_b32 s30, s25, 18")
    a("s_lshl_b32 s31, s24, 12")
    a("s_add_u32 s32, s30, s31")
    a(f"s_add_u32 s32, s32, {hex(WS_KV)}")
    a("s_lshl_b32 s35, s26, 14")
    a("s_lshl_b32 s36, s24, 11")
    a("s_add_u32 s35, s35, s36")
    a("s_lshl_b32 s36, s25, 17")
    a("s_add_u32 s35, s35, s36")
    assert WS_QF == 0
    a("s_add_u32 s33, s31, 0x10000")
    a("s_sub_u32 s34, s31, 0x4000")
    a("s_cmp_lt_u32 s24, 4")
    a("s_cselect_b32 s33, s33, s34")
    a("s_waitcnt lgkmcnt(0)")
    srd(a, 20, 8, WS_END)
    def dma_batch(b):
        base = (8*b) % NSLOT
        if base == 16: a("s_mov_b32 m0, s33")
        elif base == 0: a("s_mov_b32 m0, s31")
        else: a(f"s_add_u32 m0, s31, {hex(base*4096)}")
        if b == 0: so = "s32"
        else:
            a(f"s_add_u32 s34, s32, {hex(b*32768)}")
            so = "s34"
        if b == 0: a("s_nop 0")
        for u in range(4):
            a(f"buffer_load_dwordx4 v{vL16}, s[20:23], {so} offen offset:{u*1024} lds")
    dma_batch(0)
    a(f"buffer_load_dwordx4 {vr(Q,4)}, v{vL16}, s[20:23], s35 offen")
    a(f"buffer_load_dwordx4 {vr(Q+4,4)}, v{vL16}, s[20:23], s35 offen offset:1024")
    dma_batch(1)
    a("v_lshrrev_b32 v6, 4, v2")
    a("v_lshrrev_b32 v7, 2, v2")
    a("v_xor_b32 v6, v6, v7")
    a("v_and_b32 v6, 1, v6")
    a("v_cmp_eq_u32 vcc, 0, v6")
    a("v_mov_b32 v7, 0x3f803f80")
    a(f"v_add_u32 v{vHi}, 0x10000, v{vL16}")
    for i in range(4):
        a(f"v_cndmask_b32 v{ONES+i}, 0, v7, vcc")
    def lds(tile, off):
        sl = tile % NSLOT
        if sl < 16: return f"v{vL16} offset:{sl*4096+off}"
        return f"v{vHi} offset:{(sl-16)*4096+off}"
    def rdK(buf, tile):
        return [f"ds_read_b128 {vr(KB[buf],4)}, {lds(tile, 0)}", f"ds_read_b128 {vr(KB[buf]+4,4)}, {lds(tile, 1024)}"]
    def rdV(buf, tile):
        return [f"ds_read_b128 {vr(VB[buf],4)}, {lds(tile, 2048)}", f"ds_read_b128 {vr(VB[buf]+4,4)}, {lds(tile, 3072)}"]
    a("s_waitcnt vmcnt(4)")
    a("s_barrier")
    stamp_mid(a, 0)
    for r in rdK(0, 0) + rdK(1, 1): a(r)
    a("s_waitcnt lgkmcnt(2)")
    a(f"v_mfma_f32_32x32x16_bf16 {vr(S0,16)}, {vr(KB[0],4)}, {vr(Q,4)}, 0")
    a(f"v_mfma_f32_32x32x16_bf16 {vr(S0,16)}, {vr(KB[0]+4,4)}, {vr(Q+4,4)}, {vr(S0,16)}")
    a("s_nop 15")
    a("s_nop 3")
    a(f"v_max3_f32 v6, v{S0}, v{S0+1}, v{S0+2}")
    for i in range(3, 15, 2):
        a(f"v_max3_f32 v6, v6, v{S0+i}, v{S0+i+1}")
    a(f"v_max_f32 v6, v6, v{S0+15}")
    a("v_mov_b32 v7, v6")
    a("s_nop 1")
    a("v_permlane32_swap_b32 v6, v7")
    a("s_nop 1")
    a("v_max_f32 v6, v6, v7")
    a(f"s_mov_b32 s37, {hex(f32bits(-BOFF))}")
    a("v_sub_f32 v6, s37, v6")
    for i in range(16):
        a(f"v_mov_b32 v{NEG+i}, v6")
    a("s_nop 1")
    a(f"v_mfma_f32_32x32x16_bf16 {vr(S0,16)}, {vr(KB[0],4)}, {vr(Q,4)}, {vr(NEG,16)}")
    a(f"v_mfma_f32_32x32x16_bf16 {vr(S0,16)}, {vr(KB[0]+4,4)}, {vr(Q+4,4)}, {vr(S0,16)}")
    a("s_nop 8")
    SS = [S0, S1]
    def E(cur, i): a(f"v_exp_f32 v{cur+i}, v{cur+i}")
    def C(cur, k): a(f"v_cvt_pk_bf16_f32 v{cur+k}, v{cur+2*k}, v{cur+2*k+1}")
    def PV(u, vb, p, first=False):
        c = "0" if first else vr(O,16)
        a(f"v_mfma_f32_32x32x16_bf16 {vr(O,16)}, {vr(vb+4*u,4)}, {vr(p+4*u,4)}, {c}")
    def LS(u, p, first=False):
        c = "0" if first else vr(L,4)
        a(f"v_mfma_f32_16x16x32_bf16 {vr(L,4)}, {vr(ONES,4)}, {vr(p+4*u,4)}, {c}")
    for i in range(64):
        j = i % 2
        cur, nxt = SS[j], SS[1-j]
        kb_use = KB[1-j]
        vb_use = VB[1-j]
        if i % 8 == 6 and i <= 54:
            a("s_waitcnt vmcnt(0) lgkmcnt(0)")
            a("s_barrier")
            if i + 10 < 64: dma_batch((i + 10) // 8)
        else:
            a("s_waitcnt lgkmcnt(0)")
        kr = rdK(j, i+2) if i + 2 < 64 else ["", ""]
        vrd = rdV(j, i)
        if i > 0: PV(0, vb_use, nxt, i == 1)
        a(vrd[0]); a(vrd[1])
        E(cur,0); E(cur,1); E(cur,2)
        if i > 0: PV(1, vb_use, nxt)
        a(kr[0]); a(kr[1])
        E(cur,3); C(cur,0); E(cur,4); C(cur,1)
        if i > 0: LS(0, nxt, i == 1)
        E(cur,5)
        if i > 0: LS(1, nxt)
        E(cur,6)
        if i < 63: a(f"v_mfma_f32_32x32x16_bf16 {vr(nxt,16)}, {vr(kb_use,4)}, {vr(Q,4)}, {vr(NEG,16)}")
        C(cur,2); E(cur,7); E(cur,8); C(cur,3)
        if i < 63: a(f"v_mfma_f32_32x32x16_bf16 {vr(nxt,16)}, {vr(kb_use+4,4)}, {vr(Q+4,4)}, {vr(nxt,16)}")
        E(cur,9); E(cur,10); C(cur,4); E(cur,11); E(cur,12); C(cur,5); E(cur,13); E(cur,14); E(cur,15)
        C(cur,6); C(cur,7)
    a("s_waitcnt lgkmcnt(0)")
    PV(0, VB[1], S1); LS(0, S1); PV(1, VB[1], S1); LS(1, S1)
    stamp_mid(a, 1)
    a("s_nop 15")
    a("s_nop 3")
    a(f"v_mul_f32 v6, 0, v{L}")
    for i in range(16):
        a(f"v_fmac_f32 v6, 0, v{O+i}")
    a("v_cmp_neq_f32 vcc, 0, v6")
    a("s_cmp_lg_u64 vcc, 0")
    a("s_cbranch_scc1 K2_SLOW")
    a.label("K2_FIN")
    a(f"v_rcp_f32 v6, v{L}")
    a("s_nop 0")
    for i in range(16):
        a(f"v_mul_f32 v{O+i}, v{O+i}, v6")
    for i in range(8):
        a(f"v_cvt_pk_bf16_f32 v{O+i}, v{O+2*i}, v{O+2*i+1}")
    a("s_lshl_b32 s35, s26, 3")
    a("s_add_u32 s35, s35, s24")
    a("s_lshl_b32 s35, s35, 16")
    a("s_lshl_b32 s36, s25, 11")
    a("s_add_u32 s35, s35, s36")
    a(f"s_add_u32 s35, s35, {hex(WS_OF)}")
    a(f"buffer_store_dwordx4 {vr(O,4)}, v{vL16}, s[20:23], s35 offen{smod('o')}")
    a(f"buffer_store_dwordx4 {vr(O+4,4)}, v{vL16}, s[20:23], s35 offen offset:1024{smod('o')}")
    if "fuse" in Opt.EXP:
        import kf
        a("s_lshl_b32 s40, s26, 3")
        a("s_add_u32 s40, s40, s24")
        a("s_lshl_b32 s40, s40, 7")
        a("s_lshl_b32 s41, s25, 2")
        a("s_add_u32 s40, s40, s41")
        a(f"s_add_u32 s40, s40, {hex(WS_FO)}")
        a("s_waitcnt vmcnt(0)")
        kf.flag_store(a, "s40")
        if "fst" in Opt.EXP:
            a("s_cmp_lg_u32 s24, 0")
            a("s_cbranch_scc1 K2_NOFS")
            kf.fst_flush(a, "att", 0)
            a.label("K2_NOFS")
    maxend(a, 1, 8)
    if "p2att" in Opt.EXP:
        a("s_cmp_lt_u32 s24, 4")
        a("s_cbranch_scc1 K2_END")
        kf.gen_p2(a, att=True)
    if Opt.STAMP:
        a(f"s_cmp_lg_u32 s24, {7 if 'sw7' in Opt.EXP else 0}")
        a("s_cbranch_scc1 K2_END")
        stamp_end(a, 1, 8, "K2_ST")
    a("s_endpgm")
    a.label("K2_SLOW")
    a(f"s_add_u32 s40, s30, {hex(WS_KV)}")
    a("s_mov_b32 s41, 0")
    a("v_mov_b32 v6, 0xff800000")
    a.label("K2_SLOW1")
    a(f"buffer_load_dwordx4 {vr(KB[0],4)}, v{vL16}, s[20:23], s40 offen")
    a(f"buffer_load_dwordx4 {vr(KB[0]+4,4)}, v{vL16}, s[20:23], s40 offen offset:1024")
    a("s_waitcnt vmcnt(0)")
    a(f"v_mfma_f32_32x32x16_bf16 {vr(S0,16)}, {vr(KB[0],4)}, {vr(Q,4)}, 0")
    a(f"v_mfma_f32_32x32x16_bf16 {vr(S0,16)}, {vr(KB[0]+4,4)}, {vr(Q+4,4)}, {vr(S0,16)}")
    a("s_nop 15")
    a("s_nop 3")
    for i in range(0, 16, 2):
        a(f"v_max3_f32 v6, v6, v{S0+i}, v{S0+i+1}")
    a("s_add_u32 s40, s40, 4096")
    a("s_add_u32 s41, s41, 1")
    a("s_cmp_lt_u32 s41, 64")
    a("s_cbranch_scc1 K2_SLOW1")
    a("v_mov_b32 v7, v6")
    a("s_nop 1")
    a("v_permlane32_swap_b32 v6, v7")
    a("s_nop 1")
    a("v_max_f32 v6, v6, v7")
    a("v_sub_f32 v6, 0, v6")
    for i in range(16):
        a(f"v_mov_b32 v{NEG+i}, v6")
        a(f"v_mov_b32 v{O+i}, 0")
    for i in range(4):
        a(f"v_mov_b32 v{L+i}, 0")
    a(f"s_add_u32 s40, s30, {hex(WS_KV)}")
    a("s_mov_b32 s41, 0")
    a.label("K2_SLOW2")
    a("s_add_u32 s42, s40, 2048")
    a(f"buffer_load_dwordx4 {vr(KB[0],4)}, v{vL16}, s[20:23], s40 offen")
    a(f"buffer_load_dwordx4 {vr(KB[0]+4,4)}, v{vL16}, s[20:23], s40 offen offset:1024")
    a(f"buffer_load_dwordx4 {vr(VB[0],4)}, v{vL16}, s[20:23], s42 offen")
    a(f"buffer_load_dwordx4 {vr(VB[0]+4,4)}, v{vL16}, s[20:23], s42 offen offset:1024")
    a("s_waitcnt vmcnt(0)")
    a(f"v_mfma_f32_32x32x16_bf16 {vr(S0,16)}, {vr(KB[0],4)}, {vr(Q,4)}, {vr(NEG,16)}")
    a(f"v_mfma_f32_32x32x16_bf16 {vr(S0,16)}, {vr(KB[0]+4,4)}, {vr(Q+4,4)}, {vr(S0,16)}")
    a("s_nop 15")
    a("s_nop 3")
    for i in range(16): a(f"v_exp_f32 v{S0+i}, v{S0+i}")
    a("s_nop 0")
    for i in range(8): a(f"v_cvt_pk_bf16_f32 v{S0+i}, v{S0+2*i}, v{S0+2*i+1}")
    a("s_nop 1")
    a(f"v_mfma_f32_32x32x16_bf16 {vr(O,16)}, {vr(VB[0],4)}, {vr(S0,4)}, {vr(O,16)}")
    a(f"v_mfma_f32_16x16x32_bf16 {vr(L,4)}, {vr(ONES,4)}, {vr(S0,4)}, {vr(L,4)}")
    a(f"v_mfma_f32_32x32x16_bf16 {vr(O,16)}, {vr(VB[0]+4,4)}, {vr(S0+4,4)}, {vr(O,16)}")
    a(f"v_mfma_f32_16x16x32_bf16 {vr(L,4)}, {vr(ONES,4)}, {vr(S0+4,4)}, {vr(L,4)}")
    a("s_add_u32 s40, s40, 4096")
    a("s_add_u32 s41, s41, 1")
    a("s_cmp_lt_u32 s41, 64")
    a("s_cbranch_scc1 K2_SLOW2")
    a("s_nop 15")
    a("s_nop 3")
    a("s_branch K2_FIN")
    if K2_GRID > K2_NATT:
        import p1
        a.label("K2_P1")
        p1.gen_p1(a)
    a.label("K2_END")
    a("s_endpgm")
    return name
```

```python
from common import *
K3_GRID = 512
K3_LDS = 81920
DIST0 = 12

def gen_k3(a):
    name = "k3_wo_kernel"
    kernel_header(a, name)
    a(f"s_cmp_ge_u32 s2, {K3_GRID}")
    a("s_cbranch_scc1 K3_END")
    stamp_start(a)
    a("s_load_dwordx2 s[4:5], s[0:1], 16")
    a("s_load_dwordx2 s[6:7], s[0:1], 64")
    a("s_load_dwordx2 s[32:33], s[0:1], 80")
    a("v_lshrrev_b32 v1, 6, v0")
    a("v_and_b32 v2, 63, v0")
    a("v_readfirstlane_b32 s24, v1")
    a("v_lshlrev_b32 v3, 4, v2")
    if "k3swap" in Opt.EXP:
        a("s_xor_b32 s2, s2, 256")
    a("s_cmp_ge_u32 s2, 256")
    a(f"s_cbranch_scc1 {'K3_END' if 'k3noP' in Opt.EXP else 'K3_P2'}")
    if "k3prio" in Opt.EXP: a("s_setprio 3")
    a("s_and_b32 s28, s2, 7")
    a("s_lshr_b32 s29, s2, 3")
    a("s_lshr_b32 s30, s28, 1")
    a("s_lshl_b32 s30, s30, 2")
    a("s_and_b32 s31, s29, 3")
    a("s_add_u32 s25, s30, s31")
    a("s_and_b32 s30, s28, 1")
    a("s_lshl_b32 s30, s30, 3")
    a("s_lshr_b32 s58, s29, 2")
    a("s_add_u32 s26, s30, s58")
    if "k3norot" in Opt.EXP: a("s_mov_b32 s58, 0")
    a("v_lshrrev_b32 v6, 3, v2")
    a("v_lshlrev_b32 v6, 11, v6")
    a("v_bfe_u32 v4, v2, 2, 1")
    a("v_bfe_u32 v5, v2, 4, 1")
    a("v_xor_b32 v4, v4, v5")
    a("v_lshlrev_b32 v4, 6, v4")
    a("v_add_u32 v6, v6, v4")
    a("v_and_b32 v4, 3, v2")
    a("v_lshlrev_b32 v4, 4, v4")
    a("v_add_u32 v6, v6, v4")
    for i in range(1, 4):
        a(f"v_add_u32 v{6+i}, {i*(16384-1024)}, v6")
    ACC = 16; OF = 48; WF = 176
    VO = 240
    a(f"v_add_u32 v{VO}, 4096, v3")
    a("s_lshl_b32 s34, s25, 2")
    a("s_add_u32 s34, s34, s24")
    a("s_lshl_b32 s35, s34, 16")
    a(f"s_add_u32 s35, s35, {hex(WS_OF)}")
    a("s_lshl_b32 s36, s24, 16")
    a("s_lshl_b32 s37, s26, 7")
    a("s_add_u32 s36, s36, s37")
    a("s_lshl_b32 s57, s24, 12")
    for g in range(8):
        a(f"s_add_u32 s38, s58, {g}")
        a("s_and_b32 s38, s38, 7")
        a("s_lshl_b32 s39, s38, 13")
        a(f"s_add_u32 s{60+g}, s35, s39")
        a("s_lshl_b32 s39, s38, 18")
        a(f"s_add_u32 s{68+g}, s36, s39")
    a("s_waitcnt lgkmcnt(0)")
    srd(a, 12, 4, 1024*1024*2)
    srd(a, 20, 32, WS_END)
    NS = 5
    DIST = DIST0
    for o in Opt.EXP:
        if o.startswith("k3d") and o[3:].isdigit(): DIST = int(o[3:])
    issued = []
    def oload(j):
        if "k3noO" in Opt.EXP: return
        v = "v3" if (j & 7) < 4 else f"v{VO}"
        a(f"buffer_load_dwordx4 {vr(OF+4*(j%32),4)}, {v}, s[20:23], s{60+(j>>3)} offen offset:{(j&3)*1024}")
        issued.append(("O", j))
    m0_for = [None]
    def wpiece(m, i):
        if "k3noW" in Opt.EXP: return
        if m0_for[0] != m:
            a(f"s_add_u32 m0, s57, {hex((m % NS)*16384)}")
            a("s_nop 0")
            m0_for[0] = m
        a(f"buffer_load_dwordx4 v{6+i}, s[12:15], s{68+m} offen offset:{i*1024} lds")
        issued.append(("W", m))
    def after(kind, idx):
        L = [i for i, x in enumerate(issued) if x == (kind, idx)]
        if not L: return 63
        return len(issued) - 1 - max(L)
    LD = 4
    queue = sorted([(8*m - LD - 0.5, "W", m, i) for m in range(8) for i in range(4)] + [(j, "O", j, 0) for j in range(64)])
    P0, RATE = 12, 3
    for o in Opt.EXP:
        if o.startswith("k3o") and o[3:].isdigit(): P0 = int(o[3:])
        if o.startswith("k3r") and o[3:].isdigit(): RATE = int(o[3:])
    def pump(n, step, bars_done):
        while n > 0 and queue:
            t, kind, idx, i = queue[0]
            if kind == "O" and idx > step + DIST: break
            if kind == "W" and (t > step + DIST or idx - NS + 2 > bars_done): break
            queue.pop(0)
            if kind == "O": oload(idx)
            else: wpiece(idx, i)
            n -= 1
    pump(P0, -1, 0)
    srd(a, 16, 6, 2048*2048*2)
    if "k3a" in Opt.EXP: stamp_mid(a, 0)
    a("v_lshrrev_b32 v11, 5, v2")
    a("v_bfe_u32 v12, v2, 2, 2")
    a("v_lshlrev_b32 v13, 2, v11")
    a("v_add_u32 v13, v13, v12")
    a("v_lshlrev_b32 v13, 7, v13")
    a("v_lshrrev_b32 v12, 1, v12")
    a("v_lshlrev_b32 v12, 6, v12")
    a("v_add_u32 v13, v13, v12")
    a("v_bfe_u32 v12, v2, 4, 1")
    a("v_lshlrev_b32 v12, 5, v12")
    a("v_add_u32 v13, v13, v12")
    a("v_and_b32 v12, 3, v2")
    a("v_lshlrev_b32 v12, 3, v12")
    a("v_add_u32 v13, v13, v12")
    a("v_xor_b32 v14, 64, v13")
    a("v_add_u32 v4, 0x10000, v13")
    a("v_add_u32 v5, 0x10000, v14")
    def wread(jj):
        L = []
        sl = (jj >> 3) % NS
        off = sl*16384 + (jj & 7)*2048
        for nt in range(2):
            b = WF + (jj % 8)*8 + nt*4
            v = (13+nt) if sl < 4 else (4+nt)
            o = off if sl < 4 else off - 65536
            L.append(f"ds_read_b64_tr_b16 {vr(b,2)}, v{v} offset:{o}")
            L.append(f"ds_read_b64_tr_b16 {vr(b+2,2)}, v{v} offset:{o+1024}")
        return L
    a(f"s_waitcnt vmcnt({after('W', 0)})")
    if "k3a" in Opt.EXP: stamp_mid(a, 1)
    a("s_barrier")
    if not (Opt.EXP & {"k3a","k3b"}): stamp_mid(a, 0)
    for j in range(LD):
        for r in wread(j): a(r)
    bars = 0
    for j in range(64):
        buf = j % 8
        nv = after("O", j)
        bar = (j + LD) % 8 == 0 and j + LD < 64
        if bar: nv = min(nv, after("W", (j + LD) // 8))
        nl = 4*min(LD-1, 63-j)
        a(f"s_waitcnt vmcnt({nv}) lgkmcnt({nl})")
        for nt in range(2):
            d = vr(ACC+16*nt, 16)
            if "k3noM" not in Opt.EXP: a(f"v_mfma_f32_32x32x16_bf16 {d}, {vr(WF+buf*8+nt*4,4)}, {vr(OF+4*(j%32),4)}, {'0' if j == 0 else d}")
        if bar:
            k = (j + LD) // 8
            if "k3b" in Opt.EXP and k in (1, 4): stamp_mid(a, 0 if k == 1 else 1)
            a("s_barrier")
            bars = k
        if j + LD < 64:
            for r in wread(j + LD): a(r)
        pump(RATE, j, bars)
    if not (Opt.EXP & {"k3a","k3b"}): stamp_mid(a, 1)
    a("s_nop 15")
    a("v_and_b32 v7, 15, v2")
    a("v_lshlrev_b32 v7, 12, v7")
    a("v_lshlrev_b32 v8, 4, v11")
    a("v_add_u32 v7, v7, v8")
    a("v_bfe_u32 v8, v2, 4, 1")
    a("v_lshlrev_b32 v8, 5, v8")
    a("v_add_u32 v7, v7, v8")
    a("s_lshl_b32 s35, s34, 17")
    a("s_lshl_b32 s36, s26, 7")
    a("s_add_u32 s35, s35, s36")
    a("s_add_u32 s36, s35, 0x10000")
    for nt in range(2):
        b = ACC + 16*nt
        for i in range(8):
            a(f"v_cvt_pk_bf16_f32 v{b+i}, v{b+2*i}, v{b+2*i+1}")
        a("s_nop 1")
        a(f"v_permlane32_swap_b32 v{b}, v{b+2}")
        a(f"v_permlane32_swap_b32 v{b+1}, v{b+3}")
        a(f"v_permlane32_swap_b32 v{b+4}, v{b+6}")
        a(f"v_permlane32_swap_b32 v{b+5}, v{b+7}")
        a("s_nop 1")
        for i in range(4):
            a(f"v_permlane16_swap_b32 v{b+i}, v{b+4+i}")
        a("s_nop 1")
        a(f"buffer_store_dwordx4 {vr(b,4)}, v7, s[16:19], s35 offen offset:{nt*64}{smod('y')}")
        a(f"buffer_store_dwordx4 {vr(b+4,4)}, v7, s[16:19], s36 offen offset:{nt*64}{smod('y')}")
    if Opt.STAMP:
        a("s_cmp_lg_u32 s24, 0")
        a("s_cbranch_scc1 K3_END")
        stamp_end(a, 2, 32, "K3_ST")
        for o in Opt.EXP:
            if o.startswith("probe_"):
                _, A, B = o.split("_")
                F = {"s": 0, "e": 8, "a": 16, "b": 24}
                def off(x):
                    k = {"1": 0, "2": 1, "3": 2, "P": 1}[x[0]]
                    wg = 100 + (256 if x[0] == "P" else 0)
                    return WS_STAMP + k*65536 + wg*64 + F[x[1]]
                a("s_cmp_lg_u32 s2, 100")
                a("s_cbranch_scc1 K3_END")
                a("s_waitcnt vmcnt(0)")
                for (X, dst) in ((A, 64), (B, 65)):
                    if X[1] == "x":
                        k = int(X[0]) - 1
                        n = [1024, 4096][k] // 64
                        a(f"v_mul_u32_u24 v100, {n*4}, v2")
                        a(f"s_mov_b32 s60, {hex(WS_MAXE + k*16384)}")
                        for q in range(n // 4):
                            a(f"buffer_load_dwordx4 {vr(104+4*q,4)}, v100, s[20:23], s60 offen offset:{q*16}")
                        a("s_waitcnt vmcnt(0)")
                        for q in range(1, n):
                            a(f"v_max_u32 v104, v104, v{104+q}")
                        a("s_nop 1")
                        a(f"s_mov_b32 s{dst}, 0")
                        for l in range(64):
                            a(f"v_readlane_b32 s61, v104, {l}")
                            a("s_nop 0")
                            a(f"s_max_u32 s{dst}, s{dst}, s61")
                    else:
                        a(f"s_add_u32 s60, s32, {hex(off(X))}")
                        a(f"s_addc_u32 s61, s33, 0")
                        a(f"s_load_dword s{dst}, s[60:61], 0")
                        a("s_waitcnt lgkmcnt(0)")
                a("s_memrealtime s[66:67]")
                a("s_waitcnt lgkmcnt(0)")
                a("s_sub_u32 s64, s65, s64")
                a("s_mul_i32 s64, s64, 10")
                a("s_min_u32 s64, s64, 100000")
                a.label("K3_SPIN")
                a("s_memrealtime s[68:69]")
                a("s_waitcnt lgkmcnt(0)")
                a("s_sub_u32 s70, s68, s66")
                a("s_cmp_lt_u32 s70, s64")
                a("s_cbranch_scc1 K3_SPIN")
    a("s_waitcnt vmcnt(0)")
    a("s_endpgm")

    a.label("K3_P2")
    a("s_sub_u32 s35, s2, 256")
    a("s_lshl_b32 s35, s35, 2")
    a("s_add_u32 s35, s35, s24")
    a("s_lshl_b32 s44, s24, 12")
    FR, FI = 16, 24
    TC, TS = 32, 48
    ZA = 64
    U = 80
    T = 144
    D = 176
    def zdma():
        a("s_lshl_b32 s45, s35, 12")
        a("s_cmp_eq_u32 s35, 1024")
        a("s_cselect_b32 s45, 2048, s45")
        a(f"s_add_u32 s45, s45, {hex(WS_Z)}")
        a("s_mov_b32 m0, s44")
        a("s_add_u32 s46, s45, 2048")
        if "k3noPZ" in Opt.EXP: return
        a("buffer_load_dwordx4 v3, s[20:23], s45 offen lds")
        a("buffer_load_dwordx4 v3, s[20:23], s45 offen offset:1024 lds")
        a("s_add_u32 m0, s44, 2048")
        a("s_nop 0")
        a("buffer_load_dwordx4 v3, s[20:23], s46 offen lds")
        a("buffer_load_dwordx4 v3, s[20:23], s46 offen offset:1024 lds")
    a("s_waitcnt lgkmcnt(0)")
    srd(a, 16, 6, 2048*2048*2)
    srd(a, 20, 32, WS_END)
    zdma()
    if "k3p1" in Opt.EXP: stamp_mid(a, 0)
    a("v_and_b32 v7, 31, v2")
    a("v_lshrrev_b32 v11, 5, v2")
    a("v_cvt_f32_u32 v9, v7")
    a("v_lshlrev_b32 v10, 2, v11")
    a("v_cvt_f32_u32 v10, v10")
    a(f"v_mul_f32 v4, {hex(f32bits(1.0/32))}, v9")
    a("v_mul_f32 v5, v10, v4")
    for r in range(16):
        bb = 8*(r//4) + r % 4
        a(f"v_fmamk_f32 v{U+r}, v4, {hex(f32bits(float(bb)))}, v5")
        a(f"v_fract_f32 v{U+r}, v{U+r}")
    for r in range(16):
        a(f"v_cos_f32 v{U+16+r}, v{U+r}")
        a(f"v_sin_f32 v{U+r}, -v{U+r}")
    a(f"v_mul_f32 v9, {hex(f32bits(1.0/1024))}, v9")
    a("v_mul_f32 v10, v10, v9")
    for i in range(8):
        a(f"v_cvt_pk_bf16_f32 v{FR+i}, v{U+16+2*i}, v{U+16+2*i+1}")
        a(f"v_cvt_pk_bf16_f32 v{FI+i}, v{U+2*i}, v{U+2*i+1}")
    for r in range(16):
        bb = 8*(r//4) + r % 4
        a(f"v_fmamk_f32 v{TS+r}, v9, {hex(f32bits(float(bb)))}, v10")
    for r in range(16):
        a(f"v_cos_f32 v{TC+r}, v{TS+r}")
        a(f"v_sin_f32 v{TS+r}, -v{TS+r}")
    a("v_bfe_u32 v12, v2, 2, 2")
    a("v_lshlrev_b32 v13, 2, v11")
    a("v_add_u32 v13, v13, v12")
    a("v_lshlrev_b32 v13, 6, v13")
    a("v_bfe_u32 v12, v2, 4, 1")
    a("v_lshlrev_b32 v12, 5, v12")
    a("v_add_u32 v13, v13, v12")
    a("v_and_b32 v12, 3, v2")
    a("v_lshlrev_b32 v12, 3, v12")
    a("v_add_u32 v13, v13, v12")
    a("v_add_u32 v13, s44, v13")
    a("v_and_b32 v14, 15, v2")
    a("v_lshlrev_b32 v14, 6, v14")
    a("v_lshlrev_b32 v12, 4, v11")
    a("v_add_u32 v14, v14, v12")
    a("v_bfe_u32 v12, v2, 4, 1")
    a("v_lshlrev_b32 v12, 5, v12")
    a("v_add_u32 v14, v14, v12")
    if "k3p1" in Opt.EXP: stamp_mid(a, 1)
    a.label("K3_P2T")
    a("s_waitcnt vmcnt(0)")
    for z in range(2):
        for ks in range(2):
            b = ZA + z*8 + ks*4
            a(f"ds_read_b64_tr_b16 {vr(b,2)}, v13 offset:{z*2048+ks*1024}")
            a(f"ds_read_b64_tr_b16 {vr(b+2,2)}, v13 offset:{z*2048+ks*1024+512}")
    a("s_and_b32 s45, s35, 1023")
    a("s_cmp_eq_u32 s45, 0")
    a("s_cselect_b32 s45, 0, -1")
    a("s_waitcnt lgkmcnt(0)")
    for i in range(8):
        a(f"v_and_b32 v{ZA+8+i}, s45, v{ZA+8+i}")
    a("s_nop 1")
    for z in range(2):
        for f, F in enumerate((FR, FI)):
            d = vr(U + (2*z+f)*16, 16)
            a(f"v_mfma_f32_32x32x16_bf16 {d}, {vr(ZA+z*8,4)}, {vr(F,4)}, 0")
            a(f"v_mfma_f32_32x32x16_bf16 {d}, {vr(ZA+z*8+4,4)}, {vr(F+4,4)}, {d}")
    a("s_nop 15")
    a("s_nop 3")
    Uar, Uai, Ubr, Ubi = U, U+16, U+32, U+48
    for r in range(16):
        c, s = TC+r, TS+r
        a(f"v_mul_f32 v4, v{Uai+r}, v{s}")
        a(f"v_mul_f32 v5, v{Uai+r}, v{c}")
        a(f"v_fma_f32 v{Uai+r}, -v{Uar+r}, v{s}, -v5")
        a(f"v_fma_f32 v{Uar+r}, v{Uar+r}, v{c}, -v4")
        a(f"v_mul_f32 v4, v{Ubi+r}, v{s}")
        a(f"v_mul_f32 v5, v{Ubi+r}, v{c}")
        a(f"v_fma_f32 v{Ubi+r}, v{Ubr+r}, v{s}, v5")
        a(f"v_fma_f32 v{Ubr+r}, v{Ubr+r}, v{c}, -v4")
    for k, src in enumerate((Uar, Uai, Ubi, Ubr)):
        for i in range(8):
            a(f"v_cvt_pk_bf16_f32 v{T+8*k+i}, v{src+2*i}, v{src+2*i+1}")
    a("s_nop 1")
    a(f"v_mfma_f32_32x32x16_bf16 {vr(D,16)}, {vr(T,4)}, {vr(FR,4)}, 0")
    a(f"v_mfma_f32_32x32x16_bf16 {vr(D+16,16)}, {vr(T+16,4)}, {vr(FR,4)}, 0")
    a(f"v_mfma_f32_32x32x16_bf16 {vr(D,16)}, {vr(T+4,4)}, {vr(FR+4,4)}, {vr(D,16)}")
    a(f"v_mfma_f32_32x32x16_bf16 {vr(D+16,16)}, {vr(T+20,4)}, {vr(FR+4,4)}, {vr(D+16,16)}")
    a(f"v_mfma_f32_32x32x16_bf16 {vr(D,16)}, {vr(T+8,4)}, {vr(FI,4)}, {vr(D,16)}")
    a(f"v_mfma_f32_32x32x16_bf16 {vr(D+16,16)}, {vr(T+24,4)}, {vr(FI,4)}, {vr(D+16,16)}")
    a(f"v_mfma_f32_32x32x16_bf16 {vr(D,16)}, {vr(T+12,4)}, {vr(FI+4,4)}, {vr(D,16)}")
    a(f"v_mfma_f32_32x32x16_bf16 {vr(D+16,16)}, {vr(T+28,4)}, {vr(FI+4,4)}, {vr(D+16,16)}")
    a("s_lshl_b32 s45, s35, 12")
    a("s_add_u32 s45, s45, 2048")
    a("s_sub_u32 s46, 2048, s35")
    a("s_and_b32 s46, s46, 2047")
    a("s_lshl_b32 s46, s46, 12")
    a("s_add_u32 s46, s46, 2048")
    a("s_nop 15")
    a("s_nop 3")
    Y1, Y2 = U, U+16
    for r in range(16):
        a(f"v_sub_f32 v{Y1+r}, v{D+r}, v{D+16+r}")
        a(f"v_add_f32 v{Y2+r}, v{D+r}, v{D+16+r}")
    for Y, so in ((Y1, "s45"), (Y2, "s46")):
        for i in range(8):
            a(f"v_cvt_pk_bf16_f32 v{Y+i}, v{Y+2*i}, v{Y+2*i+1}")
        a("s_nop 1")
        a(f"v_permlane32_swap_b32 v{Y}, v{Y+2}")
        a(f"v_permlane32_swap_b32 v{Y+1}, v{Y+3}")
        a(f"v_permlane32_swap_b32 v{Y+4}, v{Y+6}")
        a(f"v_permlane32_swap_b32 v{Y+5}, v{Y+7}")
        a("s_nop 1")
        for i in range(4):
            a(f"v_permlane16_swap_b32 v{Y+i}, v{Y+4+i}")
        a("s_nop 1")
        if "k3noPS" not in Opt.EXP:
            a(f"buffer_store_dwordx4 {vr(Y,4)}, v14, s[16:19], {so} offen{smod('y')}")
            a(f"buffer_store_dwordx4 {vr(Y+4,4)}, v14, s[16:19], {so} offen offset:1024{smod('y')}")
    a("s_cmp_lg_u32 s35, 0")
    a("s_cbranch_scc1 K3_P2E")
    a("s_mov_b32 s35, 1024")
    zdma()
    a("s_branch K3_P2T")
    a.label("K3_P2E")
    if Opt.STAMP:
        a("s_cmp_lg_u32 s24, 0")
        a("s_cbranch_scc1 K3_END")
        if "k3p1" not in Opt.EXP:
            stamp_mid(a, 0); stamp_mid(a, 1)
        stamp_end(a, 2, 32, "K3_ST2")
    a("s_waitcnt vmcnt(0)")
    a.label("K3_END")
    a("s_endpgm")
    return name
```

```python
from common import *
def optint(prefix, dflt):
    for o in Opt.EXP:
        if o.startswith(prefix) and o[len(prefix):].isdigit(): return int(o[len(prefix):])
    return dflt

def flag_store(a, soff):
    a("v_mov_b32 v6, 1")
    a("v_mov_b32 v7, 0")
    a("s_mov_b64 exec, 1")
    a(f"buffer_store_dword v6, v7, s[20:23], {soff} offen sc1")
    a("s_mov_b64 exec, -1")

_fs = {}
def fst(a, role, base=76):
    if "fst" not in Opt.EXP: return
    n = _fs.get(role, 0); _fs[role] = n + 1
    assert base + 2*n + 1 < 96
    a(f"s_memrealtime s[{base+2*n}:{base+2*n+1}]")
def fst_flush(a, role, ridx, base=76):
    if "fst" not in Opt.EXP: return
    n = _fs.get(role, 0)
    a("s_waitcnt vmcnt(0)")
    a("s_memrealtime s[98:99]")
    a("s_waitcnt lgkmcnt(0)")
    a("v_mov_b32 v1, 0")
    a("v_writelane_b32 v1, s96, 0")
    for i in range(n): a(f"v_writelane_b32 v1, s{base+2*i}, {i+1}")
    a(f"v_writelane_b32 v1, s98, {n+1}")
    a("s_lshl_b32 s91, s2, 7")
    a(f"s_add_u32 s91, s91, {hex(WS_STAMP + 0x80000 + ridx*64)}")
    a("v_mbcnt_lo_u32_b32 v13, -1, 0")
    a("v_mbcnt_hi_u32_b32 v13, -1, v13")
    a("v_lshlrev_b32 v13, 2, v13")
    a("s_mov_b64 exec, 0xffff")
    a("buffer_store_dword v1, v13, s[20:23], s91 offen")
    a("s_mov_b64 exec, -1")

def tile_ids(a):
    a("s_and_b32 s28, s25, 7")
    a("s_lshr_b32 s29, s25, 3")
    a("s_lshr_b32 s30, s28, 1")
    a("s_lshl_b32 s30, s30, 2")
    a("s_and_b32 s31, s29, 3")
    a("s_add_u32 s36, s30, s31")
    a("s_and_b32 s30, s28, 1")
    a("s_lshl_b32 s30, s30, 3")
    a("s_lshr_b32 s58, s29, 2")
    a("s_add_u32 s26, s30, s58")
    if "frot" not in Opt.EXP: a("s_mov_b32 s58, 0")

def gen_tail(a):
    a("s_load_dwordx2 s[4:5], s[0:1], 16")
    a("s_load_dwordx2 s[6:7], s[0:1], 64")
    for o in Opt.EXP:
        if o.startswith("p2prio"): a(f"s_setprio {o[6:]}")
    a("s_waitcnt vmcnt(0)")
    fst(a, "all", 72)
    a("s_barrier")
    a("s_cmp_lg_u32 s24, 0")
    a("s_cbranch_scc1 KF_NOFLAG")
    a("s_lshl_b32 s33, s26, 5")
    a("s_add_u32 s33, s33, s27")
    a("s_lshl_b32 s33, s33, 2")
    a(f"s_add_u32 s33, s33, {hex(WS_FZ)}")
    flag_store(a, "s33")
    a.label("KF_NOFLAG")
    a("v_lshlrev_b32 v3, 4, v2")
    a("s_cmp_ge_u32 s24, 4")
    a("s_cbranch_scc1 KF_WO")
    if "p2att" in Opt.EXP:
        a("s_waitcnt lgkmcnt(0)")
        a("s_cmp_lg_u32 s24, 0")
        a("s_cbranch_scc1 KF_WST")
        gen_poller(a)
    else:
        gen_p2(a)
    gen_wo(a)

def p2_consts(a, FR, FI, TC, TS, U, part=3):
    a("v_and_b32 v7, 31, v2")
    a("v_lshrrev_b32 v11, 5, v2")
    a("v_cvt_f32_u32 v9, v7")
    a("v_lshlrev_b32 v10, 2, v11")
    a("v_cvt_f32_u32 v10, v10")
    if part & 1:
        a(f"v_mul_f32 v4, {hex(f32bits(1.0/32))}, v9")
        a("v_mul_f32 v5, v10, v4")
        for r in range(16):
            bb = 8*(r//4) + r % 4
            a(f"v_fmamk_f32 v{U+r}, v4, {hex(f32bits(float(bb)))}, v5")
            a(f"v_fract_f32 v{U+r}, v{U+r}")
        for r in range(16):
            a(f"v_cos_f32 v{U+16+r}, v{U+r}")
            a(f"v_sin_f32 v{U+r}, -v{U+r}")
        a("s_nop 0")
        for i in range(8):
            a(f"v_cvt_pk_bf16_f32 v{FR+i}, v{U+16+2*i}, v{U+16+2*i+1}")
            a(f"v_cvt_pk_bf16_f32 v{FI+i}, v{U+2*i}, v{U+2*i+1}")
    if part & 2:
        a(f"v_mul_f32 v9, {hex(f32bits(1.0/1024))}, v9")
        a("v_mul_f32 v10, v10, v9")
        for r in range(16):
            bb = 8*(r//4) + r % 4
            a(f"v_fmamk_f32 v{TS+r}, v9, {hex(f32bits(float(bb)))}, v10")
        for r in range(16):
            a(f"v_cos_f32 v{TC+r}, v{TS+r}")
            a(f"v_sin_f32 v{TS+r}, -v{TS+r}")
        a("s_nop 0")

def addr_tables(a, B):
    a("v_lshrrev_b32 v7, 5, v2")
    a("v_lshrrev_b32 v8, 4, v2")
    a("v_bfe_u32 v9, v2, 2, 2")
    a("v_and_b32 v10, 3, v2")
    a("v_lshlrev_b32 v11, 1, v7")
    a("v_xor_b32 v11, v11, v10")
    a("v_lshlrev_b32 v11, 4, v11")
    a(f"v_lshrrev_b32 v{B}, 2, v2")
    a(f"v_lshl_add_u32 v{B}, v{B}, 6, v11")
    a(f"v_lshl_add_u32 v{B+1}, v8, 3, v9")
    a(f"v_lshlrev_b32 v{B+1}, 6, v{B+1}")
    a("v_and_b32 v11, 1, v8")
    a(f"v_lshl_add_u32 v{B+1}, v11, 5, v{B+1}")
    a(f"v_lshl_add_u32 v{B+1}, v10, 3, v{B+1}")
    a(f"v_lshl_add_u32 v{B+3}, v7, 3, v9")
    a(f"v_lshlrev_b32 v{B+3}, 6, v{B+3}")
    a(f"v_lshl_add_u32 v{B+3}, v11, 5, v{B+3}")
    a(f"v_lshl_add_u32 v{B+3}, v10, 3, v{B+3}")
    a(f"v_lshl_add_u32 v{B+4}, v7, 2, v9")
    a(f"v_lshlrev_b32 v{B+4}, 6, v{B+4}")
    a(f"v_lshl_add_u32 v{B+4}, v11, 5, v{B+4}")
    a(f"v_lshl_add_u32 v{B+4}, v10, 3, v{B+4}")
    a(f"v_and_b32 v{B+5}, 15, v2")
    a(f"v_lshlrev_b32 v{B+5}, 6, v{B+5}")
    a(f"v_lshl_add_u32 v{B+5}, v7, 4, v{B+5}")
    a(f"v_lshl_add_u32 v{B+5}, v11, 5, v{B+5}")
    a(f"v_mov_b32 v{B+6}, 0")
    a(f"v_mov_b32 v{B+7}, 0")
    a("v_and_b32 v9, 7, v2")
    a(f"v_lshlrev_b32 v{B+2}, 12, v9")
    a("v_bfe_u32 v10, v2, 3, 1")
    a(f"v_lshl_add_u32 v{B+2}, v10, 11, v{B+2}")
    a("v_and_b32 v10, 3, v2")
    a(f"v_lshl_add_u32 v{B+2}, v10, 6, v{B+2}")
    a("v_bfe_u32 v10, v2, 2, 1")
    a(f"v_lshl_add_u32 v{B+2}, v10, 5, v{B+2}")
    a(f"v_lshl_add_u32 v{B+2}, v8, 3, v{B+2}")

def k1_table(a):
    a("s_cmp_eq_u32 s2, 9")
    a("s_cbranch_scc0 K1_NOTAB")
    a(f"s_cmp_ge_u32 s24, {3 if 'p1d' in Opt.EXP else 2}")
    a("s_cbranch_scc1 K1_NOTAB")
    a("v_lshlrev_b32 v6, 4, v2")
    if "p1d" in Opt.EXP:
        a("s_cmp_eq_u32 s24, 2")
        a("s_cbranch_scc0 K1_TAB0")
        addr_tables(a, 112)
        a(f"s_mov_b32 s36, {hex(WS_TAB + 12288)}")
        a(f"buffer_store_dwordx4 {vr(112,4)}, v6, s[20:23], s36 offen")
        a(f"buffer_store_dwordx4 {vr(116,4)}, v6, s[20:23], s36 offen offset:1024")
        a("s_branch K1_NOTAB")
        a.label("K1_TAB0")
    a("s_cmp_eq_u32 s24, 1")
    a("s_cbranch_scc1 K1_TAB1")
    p2_consts(a, 112, 120, 160, 176, 128, part=1)
    a(f"s_mov_b32 s36, {hex(WS_TAB)}")
    for q in range(4):
        a(f"buffer_store_dwordx4 {vr(112+4*q,4)}, v6, s[20:23], s36 offen offset:{q*1024}")
    a("s_branch K1_NOTAB")
    a.label("K1_TAB1")
    p2_consts(a, 112, 120, 160, 176, 128, part=2)
    a(f"s_mov_b32 s36, {hex(WS_TAB + 4096)}")
    for q in range(8):
        if q == 4: a("s_add_u32 s36, s36, 4096")
        a(f"buffer_store_dwordx4 {vr(160+4*q,4)}, v6, s[20:23], s36 offen offset:{(q%4)*1024}")
    a.label("K1_NOTAB")

def gen_p2(a, att=False):
    if att:
        a("s_load_dwordx2 s[6:7], s[0:1], 64")
        a("s_mov_b32 s25, s2")
        a("s_sub_u32 s24, s24, 4")
        a("v_lshlrev_b32 v3, 4, v2")
    a("s_lshl_b32 s35, s25, 2")
    a("s_add_u32 s35, s35, s24")
    a("s_lshl_b32 s44, s24, 12")
    a(f"s_add_u32 s44, s44, {hex(4*4096 if att else 0x10000)}")
    FR, FI = 16, 24
    TC, TS = 96, 112
    U = 32
    ZA = [80, 4]
    T = 32
    D = 64
    if "ktab" in Opt.EXP:
        a(f"s_mov_b32 s45, {hex(WS_TAB)}")
        for q in range(12):
            r = (FR + 4*q) if q < 4 else (TC + 4*(q-4))
            if q % 4 == 0 and q: a("s_add_u32 s45, s45, 4096")
            a(f"buffer_load_dwordx4 {vr(r,4)}, v3, s[20:23], s45 offen offset:{(q%4)*1024}")
        if "p1d" not in Opt.EXP: a("v_lshrrev_b32 v11, 5, v2")
    else:
        p2_consts(a, FR, FI, TC, TS, U)
    if "p1d" in Opt.EXP:
        a(f"s_mov_b32 s45, {hex(WS_TAB + 13312)}")
        a("buffer_load_dwordx2 v[12:13], v3, s[20:23], s45 offen")
    else:
        a("v_bfe_u32 v12, v2, 2, 2")
        a("v_lshlrev_b32 v13, 2, v11")
        a("v_add_u32 v13, v13, v12")
        a("v_lshlrev_b32 v13, 6, v13")
        a("v_bfe_u32 v12, v2, 4, 1")
        a("v_lshlrev_b32 v12, 5, v12")
        a("v_add_u32 v13, v13, v12")
        a("v_and_b32 v12, 3, v2")
        a("v_lshlrev_b32 v12, 3, v12")
        a("v_add_u32 v13, v13, v12")
        a("v_add_u32 v13, s44, v13")
        a("v_and_b32 v14, 15, v2")
        a("v_lshlrev_b32 v14, 6, v14")
        a("v_lshlrev_b32 v12, 4, v11")
        a("v_add_u32 v14, v14, v12")
        a("v_bfe_u32 v12, v2, 4, 1")
        a("v_lshlrev_b32 v12, 5, v12")
        a("v_add_u32 v14, v14, v12")
    a("v_add_u32 v15, s44, v3")
    a("s_waitcnt lgkmcnt(0)")
    srd(a, 16, 6, 2048*2048*2)
    if not att:
        a("s_cmp_lg_u32 s24, 0")
        a("s_cbranch_scc1 KF_ZOK")
    a("s_bfe_u32 s45, s25, 0x30001")
    a("s_lshl_b32 s45, s45, 7")
    a(f"s_add_u32 s45, s45, {hex(WS_FZ)}")
    a("v_and_b32 v4, 31, v2")
    a("v_lshlrev_b32 v4, 2, v4")
    a.label("KF_ZPOLL")
    a("buffer_load_dword v5, v4, s[20:23], s45 offen sc1")
    a("s_waitcnt vmcnt(0)")
    a("v_cmp_ne_u32 vcc, 1, v5")
    a("s_cmp_eq_u64 vcc, 0")
    a("s_cbranch_scc1 KF_ZOK")
    a(f"s_sleep {optint('zsl', 16)}")
    a("s_branch KF_ZPOLL")
    a.label("KF_ZOK")
    if not att:
        fst(a, "p")
        a("s_barrier")
    if optint("p2act", 0): a(f"s_setprio {optint('p2act', 0)}")
    if "p1d" in Opt.EXP:
        a("s_waitcnt vmcnt(0)")
        a("v_mov_b32 v14, v13")
        a("v_add_u32 v13, s44, v12")
    a.label("KF_P2T")
    a("s_lshl_b32 s45, s35, 12")
    a("s_cmp_eq_u32 s35, 1024")
    a("s_cselect_b32 s45, 2048, s45")
    a(f"s_add_u32 s45, s45, {hex(WS_Z)}")
    a("s_lshl_b32 s46, s35, 12")
    a(f"s_add_u32 s46, s46, {hex(WS_Z + 2048)}")
    a("s_cmp_eq_u32 s35, 1024")
    a("s_cselect_b32 s46, s45, s46")
    a(f"buffer_load_dwordx4 {vr(U,4)}, v3, s[20:23], s45 offen sc1")
    a(f"buffer_load_dwordx4 {vr(U+4,4)}, v3, s[20:23], s45 offen offset:1024 sc1")
    a(f"buffer_load_dwordx4 {vr(U+8,4)}, v3, s[20:23], s46 offen sc1")
    a(f"buffer_load_dwordx4 {vr(U+12,4)}, v3, s[20:23], s46 offen offset:1024 sc1")
    for q in range(4):
        a(f"s_waitcnt vmcnt({3-q})")
        a(f"ds_write_b128 v15, {vr(U+4*q,4)} offset:{q*1024}")
    a("s_waitcnt lgkmcnt(0)")
    if "fst2" in Opt.EXP: fst(a, "q", 60)
    for z in range(2):
        for ks in range(2):
            b = ZA[z] + ks*4
            a(f"ds_read_b64_tr_b16 {vr(b,2)}, v13 offset:{z*2048+ks*1024}")
            a(f"ds_read_b64_tr_b16 {vr(b+2,2)}, v13 offset:{z*2048+ks*1024+512}")
    a("s_and_b32 s45, s35, 1023")
    a("s_cmp_eq_u32 s45, 0")
    a("s_cselect_b32 s45, 0, -1")
    a("s_waitcnt lgkmcnt(0)")
    for i in range(8):
        a(f"v_and_b32 v{ZA[1]+i}, s45, v{ZA[1]+i}")
    a("s_nop 1")
    for z in range(2):
        for f, F in enumerate((FR, FI)):
            d = vr(U + (2*z+f)*16, 16)
            a(f"v_mfma_f32_32x32x16_bf16 {d}, {vr(ZA[z],4)}, {vr(F,4)}, 0")
            a(f"v_mfma_f32_32x32x16_bf16 {d}, {vr(ZA[z]+4,4)}, {vr(F+4,4)}, {d}")
    a("s_nop 15")
    a("s_nop 3")
    Uar, Uai, Ubr, Ubi = U, U+16, U+32, U+48
    if "fst2" in Opt.EXP: fst(a, "q", 60)
    if "p2pk" in Opt.EXP:
        for r in range(0, 16, 2):
            c, s = vr(TC+r,2), vr(TS+r,2)
            ar_, ai, br, bi = vr(Uar+r,2), vr(Uai+r,2), vr(Ubr+r,2), vr(Ubi+r,2)
            a(f"v_pk_mul_f32 v[4:5], {ai}, {s}")
            a(f"v_pk_mul_f32 v[6:7], {ai}, {c}")
            a(f"v_pk_mul_f32 v[8:9], {bi}, {s}")
            a(f"v_pk_mul_f32 v[10:11], {bi}, {c}")
            a(f"v_pk_fma_f32 {ai}, {ar_}, {s}, v[6:7] neg_lo:[1,0,1] neg_hi:[1,0,1]")
            a(f"v_pk_fma_f32 {ar_}, {ar_}, {c}, v[4:5] neg_lo:[0,0,1] neg_hi:[0,0,1]")
            a(f"v_pk_fma_f32 {bi}, {br}, {s}, v[10:11]")
            a(f"v_pk_fma_f32 {br}, {br}, {c}, v[8:9] neg_lo:[0,0,1] neg_hi:[0,0,1]")
    else:
        for r in range(16):
            c, s = TC+r, TS+r
            a(f"v_mul_f32 v4, v{Uai+r}, v{s}")
            a(f"v_mul_f32 v5, v{Uai+r}, v{c}")
            a(f"v_fma_f32 v{Uai+r}, -v{Uar+r}, v{s}, -v5")
            a(f"v_fma_f32 v{Uar+r}, v{Uar+r}, v{c}, -v4")
            a(f"v_mul_f32 v4, v{Ubi+r}, v{s}")
            a(f"v_mul_f32 v5, v{Ubi+r}, v{c}")
            a(f"v_fma_f32 v{Ubi+r}, v{Ubr+r}, v{s}, v5")
            a(f"v_fma_f32 v{Ubr+r}, v{Ubr+r}, v{c}, -v4")
    for k, src in enumerate((Uar, Uai, Ubi, Ubr)):
        for i in range(8):
            a(f"v_cvt_pk_bf16_f32 v{T+8*k+i}, v{src+2*i}, v{src+2*i+1}")
    if "fst2" in Opt.EXP: fst(a, "q", 60)
    a("s_nop 1")
    a(f"v_mfma_f32_32x32x16_bf16 {vr(D,16)}, {vr(T,4)}, {vr(FR,4)}, 0")
    a(f"v_mfma_f32_32x32x16_bf16 {vr(D+16,16)}, {vr(T+16,4)}, {vr(FR,4)}, 0")
    a(f"v_mfma_f32_32x32x16_bf16 {vr(D,16)}, {vr(T+4,4)}, {vr(FR+4,4)}, {vr(D,16)}")
    a(f"v_mfma_f32_32x32x16_bf16 {vr(D+16,16)}, {vr(T+20,4)}, {vr(FR+4,4)}, {vr(D+16,16)}")
    a(f"v_mfma_f32_32x32x16_bf16 {vr(D,16)}, {vr(T+8,4)}, {vr(FI,4)}, {vr(D,16)}")
    a(f"v_mfma_f32_32x32x16_bf16 {vr(D+16,16)}, {vr(T+24,4)}, {vr(FI,4)}, {vr(D+16,16)}")
    a(f"v_mfma_f32_32x32x16_bf16 {vr(D,16)}, {vr(T+12,4)}, {vr(FI+4,4)}, {vr(D,16)}")
    a(f"v_mfma_f32_32x32x16_bf16 {vr(D+16,16)}, {vr(T+28,4)}, {vr(FI+4,4)}, {vr(D+16,16)}")
    a("s_lshl_b32 s45, s35, 12")
    a("s_add_u32 s45, s45, 2048")
    a("s_sub_u32 s46, 2048, s35")
    a("s_and_b32 s46, s46, 2047")
    a("s_lshl_b32 s46, s46, 12")
    a("s_add_u32 s46, s46, 2048")
    a("s_nop 15")
    a("s_nop 3")
    Y1, Y2 = U, U+16
    if "fst2" in Opt.EXP: fst(a, "q", 60)
    if "p2pk" in Opt.EXP:
        for r in range(0, 16, 2):
            a(f"v_pk_add_f32 {vr(Y1+r,2)}, {vr(D+r,2)}, {vr(D+16+r,2)} neg_lo:[0,1] neg_hi:[0,1]")
            a(f"v_pk_add_f32 {vr(Y2+r,2)}, {vr(D+r,2)}, {vr(D+16+r,2)}")
    else:
        for r in range(16):
            a(f"v_sub_f32 v{Y1+r}, v{D+r}, v{D+16+r}")
            a(f"v_add_f32 v{Y2+r}, v{D+r}, v{D+16+r}")
    for Y, so in ((Y1, "s45"), (Y2, "s46")):
        for i in range(8):
            a(f"v_cvt_pk_bf16_f32 v{Y+i}, v{Y+2*i}, v{Y+2*i+1}")
        a("s_nop 1")
        a(f"v_permlane32_swap_b32 v{Y}, v{Y+2}")
        a(f"v_permlane32_swap_b32 v{Y+1}, v{Y+3}")
        a(f"v_permlane32_swap_b32 v{Y+4}, v{Y+6}")
        a(f"v_permlane32_swap_b32 v{Y+5}, v{Y+7}")
        a("s_nop 1")
        for i in range(4):
            a(f"v_permlane16_swap_b32 v{Y+i}, v{Y+4+i}")
        a("s_nop 1")
        a(f"buffer_store_dwordx4 {vr(Y,4)}, v14, s[16:19], {so} offen{smod('y')}")
        a(f"buffer_store_dwordx4 {vr(Y+4,4)}, v14, s[16:19], {so} offen offset:1024{smod('y')}")
    a("s_cmp_lg_u32 s35, 0")
    a("s_cbranch_scc1 KF_P2E")
    a("s_mov_b32 s35, 1024")
    a("s_branch KF_P2T")
    a.label("KF_P2E")
    if att:
        a("s_endpgm")
        return
    a("s_cmp_lg_u32 s24, 0")
    a(f"s_cbranch_scc1 {'KF_WST' if 'wst' in Opt.EXP else 'K2_END'}")
    fst(a, "p")
    gen_poller(a)

def gen_poller(a):
    a(f"s_setprio {optint('plprio', 3)}")
    tile_ids(a)
    a("v_lshlrev_b32 v4, 3, v2")
    a("s_lshl_b32 s45, s36, 9")
    a(f"s_add_u32 s45, s45, {hex(WS_FO)}")
    a("s_mov_b32 s52, 0x00030003")
    a("s_mov_b32 s53, 0x00030003")
    a("s_mov_b64 s[50:51], 0")
    a("s_mov_b32 s40, 0")
    if "opf" in Opt.EXP:
        a("s_lshr_b32 s54, s29, 2")
        a("s_lshl_b32 s55, s36, 18")
        a("s_lshl_b32 s41, s54, 10")
        a("s_add_u32 s55, s55, s41")
        a(f"s_add_u32 s55, s55, {hex(WS_OF)}")
        a("v_bfe_u32 v5, v2, 3, 2")
        a("v_lshlrev_b32 v5, 16, v5")
        a("v_and_b32 v6, 7, v2")
        a("v_lshlrev_b32 v6, 7, v6")
        a("v_add_u32 v5, v5, v6")
        a("s_mov_b32 s54, 0")
    a("s_lshl_b32 s41, s58, 1")
    a("s_lshl_b64 s[46:47], s[52:53], s41")
    a.label("KF_PL0")
    a("s_add_u32 s41, s40, s58")
    a("s_add_u32 s41, s41, 1")
    a("s_and_b32 s41, s41, 7")
    a("s_lshl_b32 s41, s41, 1")
    a("s_lshl_b64 s[48:49], s[52:53], s41")
    a("s_or_b64 s[46:47], s[46:47], s[48:49]")
    a("s_mov_b32 s42, 0")
    a.label("KF_PL1")
    a("s_and_b64 s[48:49], s[50:51], s[46:47]")
    a("s_cmp_eq_u64 s[48:49], s[46:47]")
    if "opf" in Opt.EXP:
        a("s_cbranch_scc0 KF_PL4")
        a("s_cmp_eq_u32 s54, 0xff")
        a("s_cbranch_scc1 KF_PL2")
        a("s_cmp_lg_u32 s42, 0")
        a("s_cbranch_scc1 KF_PL2")
        a("s_branch KF_PL5")
        a.label("KF_PL4")
    else:
        a("s_cbranch_scc1 KF_PL2")
    a("s_cmp_eq_u64 s[50:51], 0")
    a("s_cbranch_scc0 KF_PL3")
    a(f"s_sleep {optint('fsl', 8)}")
    a.label("KF_PL3")
    a("s_sleep 1")
    a.label("KF_PL5")
    a("s_mov_b32 s42, 1")
    a("buffer_load_dwordx2 v[8:9], v4, s[20:23], s45 offen sc1")
    a("s_waitcnt vmcnt(0)")
    a("v_and_b32 v8, v8, v9")
    a("v_cmp_eq_u32 vcc, 1, v8")
    a("s_mov_b64 s[50:51], vcc")
    if "opf" in Opt.EXP:
        a("s_mov_b32 s43, 0")
        a.label("KF_PF0")
        a("s_lshl_b32 s41, s43, 1")
        a("s_lshl_b64 s[56:57], s[52:53], s41")
        a("s_and_b64 s[48:49], s[50:51], s[56:57]")
        a("s_cmp_eq_u64 s[48:49], s[56:57]")
        a("s_cbranch_scc0 KF_PF1")
        a("s_bitcmp1_b32 s54, s43")
        a("s_cbranch_scc1 KF_PF1")
        a("s_bitset1_b32 s54, s43")
        a("s_lshl_b32 s41, s43, 13")
        a("s_add_u32 s41, s41, s55")
        a("buffer_load_dword v10, v5, s[20:23], s41 offen sc1")
        a.label("KF_PF1")
        a("s_add_u32 s43, s43, 1")
        a("s_cmp_lt_u32 s43, 8")
        a("s_cbranch_scc1 KF_PF0")
    a("s_branch KF_PL1")
    a.label("KF_PL2")
    a("s_barrier")
    a("s_add_u32 s40, s40, 1")
    a("s_cmp_lt_u32 s40, 7")
    a("s_cbranch_scc1 KF_PL0")
    if "fst" in Opt.EXP:
        a("s_mov_b32 s80, s72")
        if "p2att" in Opt.EXP:
            a("s_mov_b32 s76, s72"); a("s_mov_b32 s78, s72")
        _fs["p"] = 3
        if "fst2" in Opt.EXP:
            for i in range(4): a(f"s_mov_b32 s{82+2*i}, s{60+2*i}")
            _fs["p"] = 7
        fst_flush(a, "p", 0)
    a("s_endpgm")

def w_voffsets(a):
    a("v_lshrrev_b32 v6, 3, v2")
    a("v_lshlrev_b32 v6, 11, v6")
    a("v_bfe_u32 v4, v2, 2, 1")
    a("v_bfe_u32 v5, v2, 4, 1")
    a("v_xor_b32 v4, v4, v5")
    a("v_lshlrev_b32 v4, 6, v4")
    a("v_add_u32 v6, v6, v4")
    a("v_and_b32 v4, 3, v2")
    a("v_lshlrev_b32 v4, 4, v4")
    a("v_add_u32 v6, v6, v4")
    for i in range(1, 4):
        a(f"v_add_u32 v{6+i}, {i*(16384-1024)}, v6")

def gen_wst(a):
    a.label("KF_WST")
    tile_ids(a)
    w_voffsets(a)
    srd(a, 12, 4, 1024*1024*2)
    a("s_add_u32 s38, s58, s24")
    a("s_add_u32 s38, s38, 4")
    a("s_and_b32 s38, s38, 7")
    a("s_lshl_b32 s38, s38, 18")
    a("s_lshl_b32 s39, s26, 7")
    a("s_add_u32 s38, s38, s39")
    for q in range(4):
        a(f"s_add_u32 s{60+q}, s38, {hex(q << 16)}")
    for q in range(4):
        for i in range(4):
            a(f"buffer_load_dwordx4 {vr(32+16*q+4*i,4)}, v{6+i}, s[12:15], s{60+q} offen offset:{i*1024}")
    a("s_sub_u32 s38, s24, 1")
    a("s_lshl_b32 s38, s38, 14")
    a("v_add_u32 v15, s38, v3")
    a("s_add_u32 s40, s24, 2")
    a.label("KF_WST1")
    a("s_barrier")
    a("s_sub_u32 s40, s40, 1")
    a("s_cmp_lg_u32 s40, 0")
    a("s_cbranch_scc1 KF_WST1")
    a("s_waitcnt vmcnt(0)")
    for part, (q0, q1) in enumerate(((0, 6), (6, 11), (11, 16))):
        if part: a("s_barrier")
        for q in range(q0, q1):
            a(f"ds_write_b128 v15, {vr(32+4*q,4)} offset:{q*1024}")
    a("s_waitcnt lgkmcnt(0)")
    a("s_endpgm")

def gen_wo(a):
    if "wst" in Opt.EXP: gen_wst(a)
    a.label("KF_WO")
    a("s_sub_u32 s24, s24, 4")
    for o in Opt.EXP:
        if o.startswith("woprio"): a(f"s_setprio {o[6:]}")
    tile_ids(a)
    w_voffsets(a)
    ACC = 16; OF = 48; WF = 96
    NOF = 12; NWF = 4
    VO = 10
    a(f"v_add_u32 v{VO}, 4096, v3")
    a("s_lshl_b32 s34, s36, 2")
    a("s_add_u32 s34, s34, s24")
    a("s_lshl_b32 s35, s34, 16")
    a(f"s_add_u32 s35, s35, {hex(WS_OF)}")
    a("s_lshl_b32 s37, s24, 16")
    a("s_lshl_b32 s38, s26, 7")
    a("s_add_u32 s37, s37, s38")
    a("s_lshl_b32 s57, s24, 12")
    for g in range(8):
        a(f"s_add_u32 s38, s58, {g}")
        a("s_and_b32 s38, s38, 7")
        a("s_lshl_b32 s39, s38, 13")
        a(f"s_add_u32 s{60+g}, s35, s39")
        a("s_lshl_b32 s39, s38, 18")
        a(f"s_add_u32 s{68+g}, s37, s39")
    a("s_waitcnt lgkmcnt(0)")
    srd(a, 12, 4, 1024*1024*2)
    srd(a, 16, 6, 2048*2048*2)
    NS = 5
    DIST = optint("fd", NOF - 1)
    assert DIST < NOF
    issued = []
    def oload(j):
        v = "v3" if (j & 7) < 4 else f"v{VO}"
        a(f"buffer_load_dwordx4 {vr(OF+4*(j%NOF),4)}, {v}, s[20:23], s{60+(j>>3)} offen offset:{(j&3)*1024} sc1")
        issued.append(("O", j))
    m0_for = [None]
    def wpiece(m, i):
        if m0_for[0] != m:
            a(f"s_add_u32 m0, s57, {hex((m % NS)*16384)}")
            a("s_nop 0")
            m0_for[0] = m
        a(f"buffer_load_dwordx4 v{6+i}, s[12:15], s{68+m} offen offset:{i*1024} lds")
        issued.append(("W", m))
    def after(kind, idx):
        L = [i for i, x in enumerate(issued) if x == (kind, idx)]
        if not L: return 63
        return len(issued) - 1 - max(L)
    LD = 3
    P2ATT = "p2att" in Opt.EXP
    for m in range(5 if P2ATT else 4):
        for i in range(4): wpiece(m, i)
    if "wpf" in Opt.EXP:
        a("v_lshlrev_b32 v12, 11, v2")
        a("s_lshl_b32 s38, s24, 18")
        a("s_lshl_b32 s39, s26, 7")
        a("s_add_u32 s38, s38, s39")
        a(f"s_add_u32 s38, s38, {hex(512*2048)}")
        a("s_add_u32 s39, s38, 0x20000")
        a("buffer_load_dword v15, v12, s[12:15], s38 offen")
        a("buffer_load_dword v15, v12, s[12:15], s39 offen")
    wl = [4] if "wst" in Opt.EXP else [4, 5, 6, 7]
    if P2ATT: wl = wl[1:]
    def wt(m):
        if m == 4 and "w4e" in Opt.EXP: return optint("w4t", 10) + 0.5
        return 8*m - LD - 0.5 - optint("fw", 0)
    queue = sorted([(wt(m), "W", m, i) for m in wl for i in range(4)] + [(j, "O", j, 0) for j in range(64)])
    P0, RATE = optint("fo", 12), optint("fr", 3)
    def pump(n, step, bars_done):
        while n > 0 and queue:
            t, kind, idx, i = queue[0]
            if kind == "O" and (idx > step + DIST or (idx >> 3) > bars_done + 1): break
            if kind == "W" and (t > step + DIST or (idx - NS + 2 > bars_done and idx > 4)): break
            queue.pop(0)
            if kind == "O": oload(idx)
            else: wpiece(idx, i)
            n -= 1
    a("v_lshrrev_b32 v11, 5, v2")
    a("v_bfe_u32 v12, v2, 2, 2")
    a("v_lshlrev_b32 v13, 2, v11")
    a("v_add_u32 v13, v13, v12")
    a("v_lshlrev_b32 v13, 7, v13")
    a("v_lshrrev_b32 v12, 1, v12")
    a("v_lshlrev_b32 v12, 6, v12")
    a("v_add_u32 v13, v13, v12")
    a("v_bfe_u32 v12, v2, 4, 1")
    a("v_lshlrev_b32 v12, 5, v12")
    a("v_add_u32 v13, v13, v12")
    a("v_and_b32 v12, 3, v2")
    a("v_lshlrev_b32 v12, 3, v12")
    a("v_add_u32 v13, v13, v12")
    a("v_xor_b32 v14, 64, v13")
    a("v_add_u32 v4, 0x10000, v13")
    a("v_add_u32 v5, 0x10000, v14")
    def wread(jj):
        L = []
        sl = (jj >> 3) % NS
        off = sl*16384 + (jj & 7)*2048
        for nt in range(2):
            b = WF + (jj % NWF)*8 + nt*4
            v = (13+nt) if sl < 4 else (4+nt)
            o = off if sl < 4 else off - 65536
            L.append(f"ds_read_b64_tr_b16 {vr(b,2)}, v{v} offset:{o}")
            L.append(f"ds_read_b64_tr_b16 {vr(b+2,2)}, v{v} offset:{o+1024}")
        return L
    if not P2ATT: a("s_barrier")
    a("s_waitcnt vmcnt(0)")
    fst(a, "w")
    a("s_barrier")
    fst(a, "w")
    if optint("wob", 0): a(f"s_setprio {optint('wob', 0)}")
    pump(P0, -1, 0)
    for j in range(LD):
        for r in wread(j): a(r)
    bars = 0
    for j in range(64):
        buf = j % NWF
        nv = after("O", j)
        bar = (j + LD) % 8 == 0 and j + LD < 64
        if bar: nv = min(nv, after("W", (j + LD) // 8))
        nl = 4*min(LD-1, 63-j)
        a(f"s_waitcnt vmcnt({min(nv, 63)}) lgkmcnt({nl})")
        for nt in range(2):
            d = vr(ACC+16*nt, 16)
            a(f"v_mfma_f32_32x32x16_bf16 {d}, {vr(WF+buf*8+nt*4,4)}, {vr(OF+4*(j%NOF),4)}, {'0' if j == 0 else d}")
        if bar:
            k = (j + LD) // 8
            a("s_barrier")
            fst(a, "w")
            bars = k
        if j + LD < 64:
            for r in wread(j + LD): a(r)
        pump(RATE, j, bars)
    assert not queue
    fst(a, "w")
    a("s_nop 15")
    a("v_and_b32 v7, 15, v2")
    a("v_lshlrev_b32 v7, 12, v7")
    a("v_lshlrev_b32 v8, 4, v11")
    a("v_add_u32 v7, v7, v8")
    a("v_bfe_u32 v8, v2, 4, 1")
    a("v_lshlrev_b32 v8, 5, v8")
    a("v_add_u32 v7, v7, v8")
    a("s_lshl_b32 s35, s34, 17")
    a("s_lshl_b32 s36, s26, 7")
    a("s_add_u32 s35, s35, s36")
    a("s_add_u32 s36, s35, 0x10000")
    for nt in range(2):
        b = ACC + 16*nt
        for i in range(8):
            a(f"v_cvt_pk_bf16_f32 v{b+i}, v{b+2*i}, v{b+2*i+1}")
        a("s_nop 1")
        a(f"v_permlane32_swap_b32 v{b}, v{b+2}")
        a(f"v_permlane32_swap_b32 v{b+1}, v{b+3}")
        a(f"v_permlane32_swap_b32 v{b+4}, v{b+6}")
        a(f"v_permlane32_swap_b32 v{b+5}, v{b+7}")
        a("s_nop 1")
        for i in range(4):
            a(f"v_permlane16_swap_b32 v{b+i}, v{b+4+i}")
        a("s_nop 1")
        a(f"buffer_store_dwordx4 {vr(b,4)}, v7, s[16:19], s35 offen offset:{nt*64}{smod('g')}")
        a(f"buffer_store_dwordx4 {vr(b+4,4)}, v7, s[16:19], s36 offen offset:{nt*64}{smod('g')}")
    if "fst" in Opt.EXP:
        a("s_cmp_lg_u32 s24, 0")
        a("s_cbranch_scc1 K2_END")
        fst_flush(a, "w", 1)
    a("s_endpgm")
```

```python
from common import *
def gen_p1(a):
    for o in Opt.EXP:
        if o.startswith("p1prio"): a(f"s_setprio {o[6:]}")
    a("s_load_dwordx4 s[4:7], s[0:1], 24")
    a("s_load_dwordx2 s[10:11], s[0:1], 40")
    a("s_load_dwordx2 s[44:45], s[0:1], 16")
    a("s_sub_u32 s25, s2, 256")
    a("s_and_b32 s28, s25, 7")
    a("s_lshr_b32 s29, s25, 3")
    a("s_and_b32 s26, s29, 7")
    a("s_lshr_b32 s29, s29, 3")
    a("s_lshl_b32 s28, s28, 2")
    a("s_add_u32 s27, s28, s29")
    P1D = "p1d" in Opt.EXP
    if P1D:
        X = 32
        FR = 96
        BU = 104
        TB = 120
        a("v_lshlrev_b32 v8, 4, v2")
        a("v_lshrrev_b32 v3, 2, v2")
        a("v_lshlrev_b32 v3, 16, v3")
        a("v_and_b32 v4, 3, v2")
        a("v_lshl_add_u32 v3, v4, 4, v3")
        a("v_and_b32 v5, 7, v2")
        a("v_lshlrev_b32 v5, 17, v5")
        a("v_lshrrev_b32 v6, 4, v2")
        a("v_lshl_add_u32 v5, v6, 4, v5")
        a("v_and_b32 v6, 15, v2")
        a("v_lshlrev_b32 v6, 18, v6")
        a("v_lshrrev_b32 v7, 5, v2")
        a("v_lshl_add_u32 v9, v7, 4, v6")
        a("s_lshl_b32 s30, s26, 3")
        a("s_add_u32 s31, s30, s24")
        a("s_lshl_b32 s35, s26, 20")
        a("s_lshl_b32 s36, s31, 12")
        a("s_waitcnt lgkmcnt(0)")
        srd(a, 12, 4, 2048*1024*2)
        srd(a, 16, 6, 2048*2048*2)
        srd(a, 20, 8, WS_END)
        srd(a, 36+4, 10, 2048*2048*2)
        a(f"s_mov_b32 s33, {hex(WS_TAB + 12288)}")
        a(f"buffer_load_dwordx4 {vr(TB,4)}, v8, s[20:23], s33 offen")
        a("s_lshl_b32 s32, s24, 13")
        a("s_lshl_b32 s33, s27, 6")
        a("s_add_u32 s32, s32, s33")
        for bb in range(4):
            for i in range(4):
                a(f"s_add_u32 s33, s32, {hex(bb*2048 + i*(1<<20))}")
                a(f"buffer_load_dwordx4 {vr(X+bb*16+i*4,4)}, v3, s[12:15], s33 offen")
        def mask(lo):
            a(f"s_mov_b32 exec_lo, {hex(lo)}")
            a(f"s_mov_b32 exec_hi, {hex(lo)}")
        for m, R in ((0x00ff00ff, 16), (0xff00ff00, 40)):
            mask(m)
            for ks in range(2):
                a(f"buffer_load_dwordx4 {vr(FR+4*ks,4)}, v5, s[{R}:{R+3}], s35 offen offset:{64*ks}")
        for m, R1, R2 in ((0x0000ffff, 16, 40), (0xffff0000, 40, 16)):
            mask(m)
            for ks in range(2):
                a(f"buffer_load_dwordx4 {vr(BU+4*ks,4)}, v9, s[{R1}:{R1+3}], s36 offen offset:{32*ks}")
                a(f"buffer_load_dwordx4 {vr(BU+8+4*ks,4)}, v9, s[{R2}:{R2+3}], s36 offen offset:{32*ks}")
        a("s_mov_b64 exec, -1")
        STG = 32768
        a("s_lshl_b32 s33, s24, 12")
        a(f"s_add_u32 s33, s33, {STG}")
        a("s_lshl_b32 s34, s24, 8")
        a("s_waitcnt vmcnt(28)")
        a(f"v_add_u32 v10, s33, v{TB}")
        a(f"v_add_u32 v11, s33, v{TB+1}")
        a("v_xor_b32 v12, 32, v11")
        a(f"v_add_u32 v18, s34, v{TB+2}")
        a("s_waitcnt vmcnt(8)")
    else:
        X = 32
        FR, FI = 96, 104
        GR, GI = 112, 120
        a("v_lshrrev_b32 v3, 2, v2")
        a("v_lshlrev_b32 v3, 16, v3")
        a("v_and_b32 v4, 3, v2")
        a("v_lshlrev_b32 v4, 4, v4")
        a("v_add_u32 v3, v3, v4")
        a("v_and_b32 v5, 7, v2")
        a("s_lshl_b32 s30, s26, 3")
        a("v_add_u32 v5, s30, v5")
        a("v_lshlrev_b32 v5, 17, v5")
        a("v_lshrrev_b32 v6, 4, v2")
        a("v_lshlrev_b32 v6, 4, v6")
        a("v_add_u32 v5, v5, v6")
        a("s_add_u32 s31, s30, s24")
        a("v_and_b32 v6, 15, v2")
        a("v_lshlrev_b32 v6, 6, v6")
        a("v_add_u32 v6, s31, v6")
        a("v_lshlrev_b32 v6, 12, v6")
        a("v_lshrrev_b32 v7, 5, v2")
        a("v_lshlrev_b32 v8, 4, v7")
        a("v_add_u32 v9, v6, v8")
        a("s_waitcnt lgkmcnt(0)")
        srd(a, 12, 4, 2048*1024*2)
        srd(a, 16, 6, 2048*2048*2)
        srd(a, 20, 8, WS_END)
        srd(a, 36, 10, 2048*2048*2)
        a("s_lshl_b32 s32, s24, 13")
        a("s_lshl_b32 s33, s27, 6")
        a("s_add_u32 s32, s32, s33")
        for bb in range(4):
            for i in range(4):
                a(f"s_add_u32 s33, s32, {hex(bb*2048 + i*(1<<20))}")
                a(f"buffer_load_dwordx4 {vr(X+bb*16+i*4,4)}, v3, s[12:15], s33 offen")
        for ks in range(2):
            a(f"buffer_load_dwordx4 {vr(FR+4*ks,4)}, v5, s[16:19], 0 offen offset:{64*ks}")
            a(f"buffer_load_dwordx4 {vr(FI+4*ks,4)}, v5, s[36:39], 0 offen offset:{64*ks}")
        for ks in range(2):
            a(f"buffer_load_dwordx4 {vr(GR+4*ks,4)}, v9, s[16:19], 0 offen offset:{32*ks}")
            a(f"buffer_load_dwordx4 {vr(GI+4*ks,4)}, v9, s[36:39], 0 offen offset:{32*ks}")
        for o in Opt.EXP:
            if o.startswith("p1pad"):
                for _ in range(int(o[5:])): a("v_mov_b32 v26, v26")
        STG = 32768
        a("v_lshrrev_b32 v10, 2, v2")
        a("v_lshlrev_b32 v10, 6, v10")
        a("v_and_b32 v11, 3, v2")
        a("v_lshlrev_b32 v12, 1, v7")
        a("v_xor_b32 v11, v11, v12")
        a("v_lshlrev_b32 v11, 4, v11")
        a("v_add_u32 v10, v10, v11")
        a("s_lshl_b32 s33, s24, 12")
        a(f"s_add_u32 s33, s33, {STG}")
        a("v_add_u32 v10, s33, v10")
        a("v_lshrrev_b32 v13, 4, v2")
        a("v_bfe_u32 v14, v2, 2, 2")
        a("v_lshlrev_b32 v11, 3, v13")
        a("v_add_u32 v11, v11, v14")
        a("v_lshlrev_b32 v11, 6, v11")
        a("v_and_b32 v15, 1, v13")
        a("v_lshlrev_b32 v15, 5, v15")
        a("v_add_u32 v11, v11, v15")
        a("v_and_b32 v15, 3, v2")
        a("v_lshlrev_b32 v15, 3, v15")
        a("v_add_u32 v11, v11, v15")
        a("v_add_u32 v11, s33, v11")
        a("v_xor_b32 v12, 32, v11")
        a("v_and_b32 v16, 7, v2")
        a("v_bfe_u32 v17, v2, 3, 1")
        a("v_lshlrev_b32 v18, 12, v16")
        a("v_lshlrev_b32 v17, 11, v17")
        a("v_add_u32 v18, v18, v17")
        a("v_and_b32 v17, 3, v16")
        a("v_lshlrev_b32 v17, 6, v17")
        a("v_add_u32 v18, v18, v17")
        a("v_bfe_u32 v17, v16, 2, 1")
        a("v_lshlrev_b32 v17, 5, v17")
        a("v_add_u32 v18, v18, v17")
        a("v_lshlrev_b32 v17, 3, v13")
        a("v_add_u32 v18, v18, v17")
        a("s_lshl_b32 s34, s24, 8")
        a("v_add_u32 v18, s34, v18")
        a("v_and_b32 v17, 8, v2")
        a("v_cmp_ne_u32 vcc, 0, v17")
        if "p1a" in Opt.EXP: stamp_mid(a, 0)
        a("s_waitcnt vmcnt(4)")
        if "p1a" in Opt.EXP: stamp_mid(a, 1)
        if "p1b" in Opt.EXP: stamp_mid(a, 0)
        a("s_nop 0")
        for i in range(8):
            a(f"v_cndmask_b32 v{FR+i}, v{FR+i}, v{FI+i}, vcc")
    A = 0+20
    ACC = [28, 124] if P1D else [28, 104]
    for bb in range(4):
        for i in range(4):
            a(f"ds_write_b128 v10, {vr(X+bb*16+i*4,4)} offset:{i*1024}")
        a("s_waitcnt lgkmcnt(0)")
        for ch in range(2):
            va = 11 + ch
            base = X + bb*16 + ch*8
            for ks in range(2):
                a(f"ds_read_b64_tr_b16 {vr(base+4*ks,2)}, v{va} offset:{ks*2048}")
                a(f"ds_read_b64_tr_b16 {vr(base+4*ks+2,2)}, v{va} offset:{ks*2048+256}")
        for ch in range(2):
            base = X + bb*16 + ch*8
            a(f"s_waitcnt lgkmcnt({4*(1-ch)})")
            a(f"v_mfma_f32_16x16x32_bf16 {vr(ACC[ch],4)}, {vr(base,4)}, {vr(FR,4)}, 0")
            a(f"v_mfma_f32_16x16x32_bf16 {vr(ACC[ch],4)}, {vr(base+4,4)}, {vr(FR+4,4)}, {vr(ACC[ch],4)}")
        a(f"v_xor_b32 v19, {bb*64}, v18")
        a("v_xor_b32 v20, 32, v19")
        a("s_nop 5")
        for ch in range(2):
            a(f"v_cvt_pk_bf16_f32 v{22+2*ch}, v{ACC[ch]}, v{ACC[ch]+1}")
            a(f"v_cvt_pk_bf16_f32 v{23+2*ch}, v{ACC[ch]+2}, v{ACC[ch]+3}")
        a("ds_write_b64 v19, v[22:23]")
        a("ds_write_b64 v20, v[24:25]")
    if P1D:
        a("s_mov_b32 s44, 0x80008000")
        a("s_and_b32 s33, s24, 3")
        a("s_lshl_b32 s33, s33, 6")
        a("s_bfe_u32 s34, s24, 0x10002")
        a("s_lshl_b32 s34, s34, 5")
        a("s_or_b32 s33, s33, s34")
        a(f"v_xor_b32 v11, s33, v{TB+3}")
        a("s_lshl_b32 s33, s24, 12")
        a("v_add_u32 v11, s33, v11")
        a("s_waitcnt vmcnt(0)")
        mask(0x0000ffff)
        for i in range(8):
            a(f"v_xor_b32 v{BU+8+i}, s44, v{BU+8+i}")
        a("s_mov_b64 exec, -1")
        a("s_cmp_lg_u32 s31, 0")
        a("s_cbranch_scc1 P1_NONYQ")
        mask(0x10000)
        for i in range(8):
            a(f"v_mov_b32 v{BU+i}, 0xbf803f80")
        a("s_mov_b64 exec, -1")
        a.label("P1_NONYQ")
    else:
        BU = 32
        a("v_and_b32 v17, 16, v2")
        a("v_cmp_ne_u32 vcc, 0, v17")
        a("s_mov_b32 s40, 0x80008000")
        a("s_cmp_eq_u32 s31, 0")
        a("s_cselect_b32 s42, 0x10000, 0")
        a("s_mov_b32 s43, s42")
        a("v_mov_b32 v17, 0xbf803f80")
        a("s_waitcnt vmcnt(0)")
        for i in range(8):
            a(f"v_xor_b32 v{BU+16+i}, s40, v{GI+i}")
            a(f"v_cndmask_b32 v{BU+i}, v{GR+i}, v{GI+i}, vcc")
        for i in range(8):
            a(f"v_cndmask_b32 v{BU+8+i}, v{BU+16+i}, v{GR+i}, vcc")
            a(f"v_cndmask_b32 v{BU+i}, v{BU+i}, v17, s[42:43]")
        a("s_and_b32 s33, s24, 3")
        a("v_xor_b32 v11, s33, v14")
        a("v_lshlrev_b32 v12, 3, v7")
        a("v_add_u32 v11, v11, v12")
        a("v_lshlrev_b32 v11, 6, v11")
        a("s_bfe_u32 s33, s24, 0x10002")
        a("v_bfe_u32 v12, v2, 4, 1")
        a("v_xor_b32 v12, s33, v12")
        a("v_lshlrev_b32 v12, 5, v12")
        a("v_add_u32 v11, v11, v12")
        a("v_add_u32 v11, v11, v15")
        a("s_lshl_b32 s33, s24, 12")
        a("v_add_u32 v11, s33, v11")
    a("s_waitcnt lgkmcnt(0)")
    a("s_barrier")
    if "p1b" in Opt.EXP: stamp_mid(a, 1)
    UA = 64
    for ri in range(2):
        for ks in range(2):
            base = UA + ri*8 + ks*4
            a(f"ds_read_b64_tr_b16 {vr(base,2)}, v11 offset:{ri*2048+ks*1024}")
            a(f"ds_read_b64_tr_b16 {vr(base+2,2)}, v11 offset:{ri*2048+ks*1024+256}")
    D = 80
    if P1D:
        a("v_bfe_u32 v13, v2, 4, 1")
        a("v_lshl_add_u32 v12, v13, 11, v9")
    else:
        a("v_and_b32 v12, 15, v2")
        a("v_lshlrev_b32 v12, 18, v12")
        a("v_bfe_u32 v13, v2, 4, 1")
        a("v_lshlrev_b32 v13, 11, v13")
        a("v_add_u32 v12, v12, v13")
        a("v_add_u32 v12, v12, v8")
    a("s_lshl_b32 s33, s31, 12")
    a("s_lshl_b32 s34, s27, 6")
    a("s_add_u32 s33, s33, s34")
    a(f"s_add_u32 s33, s33, {hex(WS_Z)}")
    for q in range(4):
        ri, ks = q // 2, q % 2
        a(f"s_waitcnt lgkmcnt({6-2*q})")
        c = "0" if q == 0 else vr(D,16)
        a(f"v_mfma_f32_32x32x16_bf16 {vr(D,16)}, {vr(UA+ri*8+ks*4,4)}, {vr(BU+ri*8+ks*4,4)}, {c}")
    a("s_nop 15")
    a("s_nop 3")
    for i in range(8):
        a(f"v_cvt_pk_bf16_f32 v{D+i}, v{D+2*i}, v{D+2*i+1}")
    a("s_nop 1")
    a(f"v_permlane32_swap_b32 v{D}, v{D+2}")
    a(f"v_permlane32_swap_b32 v{D+1}, v{D+3}")
    a(f"v_permlane32_swap_b32 v{D+4}, v{D+6}")
    a(f"v_permlane32_swap_b32 v{D+5}, v{D+7}")
    a("s_nop 1")
    a(f"buffer_store_dwordx4 {vr(D,4)}, v12, s[20:23], s33 offen{smod('z')}")
    a(f"buffer_store_dwordx4 {vr(D+4,4)}, v12, s[20:23], s33 offen offset:32{smod('z')}")
    if "fuse" in Opt.EXP:
        import kf
        kf.gen_tail(a)
        return
    if "nowopf" not in Opt.EXP:
        srd(a, 48, 44, 1024*1024*2)
        a("s_lshr_b32 s46, s25, 3")
        a("s_lshl_b32 s46, s46, 16")
        a("s_lshl_b32 s47, s24, 13")
        a("s_add_u32 s46, s46, s47")
        a("s_and_b32 s47, s25, 1")
        a("s_lshl_b32 s47, s47, 10")
        a("s_add_u32 s46, s46, s47")
        a("v_lshrrev_b32 v10, 4, v2")
        a("v_lshlrev_b32 v10, 11, v10")
        a("v_and_b32 v11, 15, v2")
        a("v_lshlrev_b32 v11, 6, v11")
        a("v_add_u32 v10, v10, v11")
        a("buffer_load_dword v27, v10, s[48:51], s46 offen")
    maxend(a, 1, 8)
    if Opt.STAMP:
        a("s_cmp_lg_u32 s24, 0")
        a("s_cbranch_scc1 K2_END")
        if not (Opt.EXP & {"p1a", "p1b"}):
            stamp_mid(a, 0); stamp_mid(a, 1)
        stamp_end(a, 1, 8, "P1_ST", slot=(1, 3))
    a("s_endpgm")
```

```python
from common import *
K2_LDS = 81920
K2_NATT = 256
K2_GRID = 512
BOFF = 96.0

def gen_k2(a):
    name = "k2_attn_kernel"
    kernel_header(a, name)
    global K2_GRID
    a(f"s_cmp_ge_u32 s2, {K2_GRID}")
    a("s_cbranch_scc1 K2_END")
    stamp_start(a)
    if "fst" in Opt.EXP: a("s_memrealtime s[96:97]")
    a("s_load_dwordx2 s[8:9], s[0:1], 80")
    a("v_lshrrev_b32 v1, 6, v0")
    a("v_and_b32 v2, 63, v0")
    a("v_readfirstlane_b32 s24, v1")
    if K2_GRID > K2_NATT:
        a(f"s_cmp_ge_u32 s2, {K2_NATT}")
        a("s_cbranch_scc1 K2_P1")
    Q, NEG, S0, S1, O, L, ONES = 8, 16, 32, 48, 64, 80, 84
    KB = [88, 96]; VB = [104, 112]
    vL16, vHi = 3, 4
    NSLOT = 20
    a("s_and_b32 s28, s2, 7")
    a("s_lshr_b32 s29, s2, 3")
    a("s_lshr_b32 s30, s29, 3")
    if "hmap" in Opt.EXP:
        a("s_lshl_b32 s25, s30, 1")
        a("s_lshr_b32 s31, s28, 2")
        a("s_add_u32 s25, s25, s31")
        a("s_lshl_b32 s25, s25, 2")
        a("s_and_b32 s28, s28, 3")
        a("s_add_u32 s25, s25, s28")
    else:
        a("s_lshl_b32 s28, s28, 2")
        a("s_add_u32 s25, s28, s30")
    a("s_and_b32 s26, s29, 7")
    a(f"v_lshlrev_b32 v{vL16}, 4, v2")
    a("s_lshl_b32 s30, s25, 18")
    a("s_lshl_b32 s31, s24, 12")
    a("s_add_u32 s32, s30, s31")
    a(f"s_add_u32 s32, s32, {hex(WS_KV)}")
    a("s_lshl_b32 s35, s26, 14")
    a("s_lshl_b32 s36, s24, 11")
    a("s_add_u32 s35, s35, s36")
    a("s_lshl_b32 s36, s25, 17")
    a("s_add_u32 s35, s35, s36")
    assert WS_QF == 0
    a("s_add_u32 s33, s31, 0x10000")
    a("s_sub_u32 s34, s31, 0x4000")
    a("s_cmp_lt_u32 s24, 4")
    a("s_cselect_b32 s33, s33, s34")
    a("s_waitcnt lgkmcnt(0)")
    srd(a, 20, 8, WS_END)
    def dma_batch(b):
        base = (8*b) % NSLOT
        if base == 16: a("s_mov_b32 m0, s33")
        elif base == 0: a("s_mov_b32 m0, s31")
        else: a(f"s_add_u32 m0, s31, {hex(base*4096)}")
        if b == 0: so = "s32"
        else:
            a(f"s_add_u32 s34, s32, {hex(b*32768)}")
            so = "s34"
        if b == 0: a("s_nop 0")
        for u in range(4):
            a(f"buffer_load_dwordx4 v{vL16}, s[20:23], {so} offen offset:{u*1024} lds")
    dma_batch(0)
    a(f"buffer_load_dwordx4 {vr(Q,4)}, v{vL16}, s[20:23], s35 offen")
    a(f"buffer_load_dwordx4 {vr(Q+4,4)}, v{vL16}, s[20:23], s35 offen offset:1024")
    dma_batch(1)
    a("v_lshrrev_b32 v6, 4, v2")
    a("v_lshrrev_b32 v7, 2, v2")
    a("v_xor_b32 v6, v6, v7")
    a("v_and_b32 v6, 1, v6")
    a("v_cmp_eq_u32 vcc, 0, v6")
    a("v_mov_b32 v7, 0x3f803f80")
    a(f"v_add_u32 v{vHi}, 0x10000, v{vL16}")
    for i in range(4):
        a(f"v_cndmask_b32 v{ONES+i}, 0, v7, vcc")
    def lds(tile, off):
        sl = tile % NSLOT
        if sl < 16: return f"v{vL16} offset:{sl*4096+off}"
        return f"v{vHi} offset:{(sl-16)*4096+off}"
    def rdK(buf, tile):
        return [f"ds_read_b128 {vr(KB[buf],4)}, {lds(tile, 0)}", f"ds_read_b128 {vr(KB[buf]+4,4)}, {lds(tile, 1024)}"]
    def rdV(buf, tile):
        return [f"ds_read_b128 {vr(VB[buf],4)}, {lds(tile, 2048)}", f"ds_read_b128 {vr(VB[buf]+4,4)}, {lds(tile, 3072)}"]
    a("s_waitcnt vmcnt(4)")
    a("s_barrier")
    stamp_mid(a, 0)
    for r in rdK(0, 0) + rdK(1, 1): a(r)
    a("s_waitcnt lgkmcnt(2)")
    a(f"v_mfma_f32_32x32x16_bf16 {vr(S0,16)}, {vr(KB[0],4)}, {vr(Q,4)}, 0")
    a(f"v_mfma_f32_32x32x16_bf16 {vr(S0,16)}, {vr(KB[0]+4,4)}, {vr(Q+4,4)}, {vr(S0,16)}")
    a("s_nop 15")
    a("s_nop 3")
    a(f"v_max3_f32 v6, v{S0}, v{S0+1}, v{S0+2}")
    for i in range(3, 15, 2):
        a(f"v_max3_f32 v6, v6, v{S0+i}, v{S0+i+1}")
    a(f"v_max_f32 v6, v6, v{S0+15}")
    a("v_mov_b32 v7, v6")
    a("s_nop 1")
    a("v_permlane32_swap_b32 v6, v7")
    a("s_nop 1")
    a("v_max_f32 v6, v6, v7")
    a(f"s_mov_b32 s37, {hex(f32bits(-BOFF))}")
    a("v_sub_f32 v6, s37, v6")
    for i in range(16):
        a(f"v_mov_b32 v{NEG+i}, v6")
    a("s_nop 1")
    a(f"v_mfma_f32_32x32x16_bf16 {vr(S0,16)}, {vr(KB[0],4)}, {vr(Q,4)}, {vr(NEG,16)}")
    a(f"v_mfma_f32_32x32x16_bf16 {vr(S0,16)}, {vr(KB[0]+4,4)}, {vr(Q+4,4)}, {vr(S0,16)}")
    a("s_nop 8")
    SS = [S0, S1]
    def E(cur, i): a(f"v_exp_f32 v{cur+i}, v{cur+i}")
    def C(cur, k): a(f"v_cvt_pk_bf16_f32 v{cur+k}, v{cur+2*k}, v{cur+2*k+1}")
    def PV(u, vb, p, first=False):
        c = "0" if first else vr(O,16)
        a(f"v_mfma_f32_32x32x16_bf16 {vr(O,16)}, {vr(vb+4*u,4)}, {vr(p+4*u,4)}, {c}")
    def LS(u, p, first=False):
        c = "0" if first else vr(L,4)
        a(f"v_mfma_f32_16x16x32_bf16 {vr(L,4)}, {vr(ONES,4)}, {vr(p+4*u,4)}, {c}")
    for i in range(64):
        j = i % 2
        cur, nxt = SS[j], SS[1-j]
        kb_use = KB[1-j]
        vb_use = VB[1-j]
        if i % 8 == 6 and i <= 54:
            a("s_waitcnt vmcnt(0) lgkmcnt(0)")
            a("s_barrier")
            if i + 10 < 64: dma_batch((i + 10) // 8)
        else:
            a("s_waitcnt lgkmcnt(0)")
        for o in Opt.EXP:
            if o.startswith("eq") and o[2:].isdigit() and i == int(o[2:]):
                a("s_cmp_lt_u32 s24, 4")
                a(f"s_cbranch_scc1 K2_EQ{i}")
                a("s_setprio 1")
                a.label(f"K2_EQ{i}")
        kr = rdK(j, i+2) if i + 2 < 64 else ["", ""]
        vrd = rdV(j, i)
        if i > 0: PV(0, vb_use, nxt, i == 1)
        a(vrd[0]); a(vrd[1])
        E(cur,0); E(cur,1); E(cur,2)
        if i > 0: PV(1, vb_use, nxt)
        a(kr[0]); a(kr[1])
        E(cur,3); C(cur,0); E(cur,4); C(cur,1)
        if i > 0: LS(0, nxt, i == 1)
        E(cur,5)
        if i > 0: LS(1, nxt)
        E(cur,6)
        if i < 63: a(f"v_mfma_f32_32x32x16_bf16 {vr(nxt,16)}, {vr(kb_use,4)}, {vr(Q,4)}, {vr(NEG,16)}")
        C(cur,2); E(cur,7); E(cur,8); C(cur,3)
        if i < 63: a(f"v_mfma_f32_32x32x16_bf16 {vr(nxt,16)}, {vr(kb_use+4,4)}, {vr(Q+4,4)}, {vr(nxt,16)}")
        E(cur,9); E(cur,10); C(cur,4); E(cur,11); E(cur,12); C(cur,5); E(cur,13); E(cur,14); E(cur,15)
        C(cur,6); C(cur,7)
    a("s_waitcnt lgkmcnt(0)")
    PV(0, VB[1], S1); LS(0, S1); PV(1, VB[1], S1); LS(1, S1)
    stamp_mid(a, 1)
    a("s_nop 15")
    a("s_nop 3")
    if any(o.startswith("eq") and o[2:].isdigit() for o in Opt.EXP): a("s_setprio 0")
    a(f"v_mul_f32 v6, 0, v{L}")
    for i in range(16):
        a(f"v_fmac_f32 v6, 0, v{O+i}")
    a("v_cmp_neq_f32 vcc, 0, v6")
    a("s_cmp_lg_u64 vcc, 0")
    a("s_cbranch_scc1 K2_SLOW")
    a.label("K2_FIN")
    a(f"v_rcp_f32 v6, v{L}")
    a("s_nop 0")
    for i in range(16):
        a(f"v_mul_f32 v{O+i}, v{O+i}, v6")
    for i in range(8):
        a(f"v_cvt_pk_bf16_f32 v{O+i}, v{O+2*i}, v{O+2*i+1}")
    a("s_lshl_b32 s35, s26, 3")
    a("s_add_u32 s35, s35, s24")
    a("s_lshl_b32 s35, s35, 16")
    a("s_lshl_b32 s36, s25, 11")
    a("s_add_u32 s35, s35, s36")
    a(f"s_add_u32 s35, s35, {hex(WS_OF)}")
    a(f"buffer_store_dwordx4 {vr(O,4)}, v{vL16}, s[20:23], s35 offen{smod('o')}")
    a(f"buffer_store_dwordx4 {vr(O+4,4)}, v{vL16}, s[20:23], s35 offen offset:1024{smod('o')}")
    if "fuse" in Opt.EXP:
        import kf
        a("s_lshl_b32 s40, s26, 3")
        a("s_add_u32 s40, s40, s24")
        a("s_lshl_b32 s40, s40, 7")
        a("s_lshl_b32 s41, s25, 2")
        a("s_add_u32 s40, s40, s41")
        a(f"s_add_u32 s40, s40, {hex(WS_FO)}")
        a("s_waitcnt vmcnt(0)")
        kf.flag_store(a, "s40")
        if "fst" in Opt.EXP:
            a("s_cmp_lg_u32 s24, 0")
            a("s_cbranch_scc1 K2_NOFS")
            kf.fst_flush(a, "att", 0)
            a.label("K2_NOFS")
    maxend(a, 1, 8)
    if "p2att" in Opt.EXP:
        a("s_cmp_lt_u32 s24, 4")
        a("s_cbranch_scc1 K2_END")
        kf.gen_p2(a, att=True)
    if Opt.STAMP:
        a(f"s_cmp_lg_u32 s24, {7 if 'sw7' in Opt.EXP else 0}")
        a("s_cbranch_scc1 K2_END")
        stamp_end(a, 1, 8, "K2_ST")
    a("s_endpgm")
    a.label("K2_SLOW")
    a(f"s_add_u32 s40, s30, {hex(WS_KV)}")
    a("s_mov_b32 s41, 0")
    a("v_mov_b32 v6, 0xff800000")
    a.label("K2_SLOW1")
    a(f"buffer_load_dwordx4 {vr(KB[0],4)}, v{vL16}, s[20:23], s40 offen")
    a(f"buffer_load_dwordx4 {vr(KB[0]+4,4)}, v{vL16}, s[20:23], s40 offen offset:1024")
    a("s_waitcnt vmcnt(0)")
    a(f"v_mfma_f32_32x32x16_bf16 {vr(S0,16)}, {vr(KB[0],4)}, {vr(Q,4)}, 0")
    a(f"v_mfma_f32_32x32x16_bf16 {vr(S0,16)}, {vr(KB[0]+4,4)}, {vr(Q+4,4)}, {vr(S0,16)}")
    a("s_nop 15")
    a("s_nop 3")
    for i in range(0, 16, 2):
        a(f"v_max3_f32 v6, v6, v{S0+i}, v{S0+i+1}")
    a("s_add_u32 s40, s40, 4096")
    a("s_add_u32 s41, s41, 1")
    a("s_cmp_lt_u32 s41, 64")
    a("s_cbranch_scc1 K2_SLOW1")
    a("v_mov_b32 v7, v6")
    a("s_nop 1")
    a("v_permlane32_swap_b32 v6, v7")
    a("s_nop 1")
    a("v_max_f32 v6, v6, v7")
    a("v_sub_f32 v6, 0, v6")
    for i in range(16):
        a(f"v_mov_b32 v{NEG+i}, v6")
        a(f"v_mov_b32 v{O+i}, 0")
    for i in range(4):
        a(f"v_mov_b32 v{L+i}, 0")
    a(f"s_add_u32 s40, s30, {hex(WS_KV)}")
    a("s_mov_b32 s41, 0")
    a.label("K2_SLOW2")
    a("s_add_u32 s42, s40, 2048")
    a(f"buffer_load_dwordx4 {vr(KB[0],4)}, v{vL16}, s[20:23], s40 offen")
    a(f"buffer_load_dwordx4 {vr(KB[0]+4,4)}, v{vL16}, s[20:23], s40 offen offset:1024")
    a(f"buffer_load_dwordx4 {vr(VB[0],4)}, v{vL16}, s[20:23], s42 offen")
    a(f"buffer_load_dwordx4 {vr(VB[0]+4,4)}, v{vL16}, s[20:23], s42 offen offset:1024")
    a("s_waitcnt vmcnt(0)")
    a(f"v_mfma_f32_32x32x16_bf16 {vr(S0,16)}, {vr(KB[0],4)}, {vr(Q,4)}, {vr(NEG,16)}")
    a(f"v_mfma_f32_32x32x16_bf16 {vr(S0,16)}, {vr(KB[0]+4,4)}, {vr(Q+4,4)}, {vr(S0,16)}")
    a("s_nop 15")
    a("s_nop 3")
    for i in range(16): a(f"v_exp_f32 v{S0+i}, v{S0+i}")
    a("s_nop 0")
    for i in range(8): a(f"v_cvt_pk_bf16_f32 v{S0+i}, v{S0+2*i}, v{S0+2*i+1}")
    a("s_nop 1")
    a(f"v_mfma_f32_32x32x16_bf16 {vr(O,16)}, {vr(VB[0],4)}, {vr(S0,4)}, {vr(O,16)}")
    a(f"v_mfma_f32_16x16x32_bf16 {vr(L,4)}, {vr(ONES,4)}, {vr(S0,4)}, {vr(L,4)}")
    a(f"v_mfma_f32_32x32x16_bf16 {vr(O,16)}, {vr(VB[0]+4,4)}, {vr(S0+4,4)}, {vr(O,16)}")
    a(f"v_mfma_f32_16x16x32_bf16 {vr(L,4)}, {vr(ONES,4)}, {vr(S0+4,4)}, {vr(L,4)}")
    a("s_add_u32 s40, s40, 4096")
    a("s_add_u32 s41, s41, 1")
    a("s_cmp_lt_u32 s41, 64")
    a("s_cbranch_scc1 K2_SLOW2")
    a("s_nop 15")
    a("s_nop 3")
    a("s_branch K2_FIN")
    if K2_GRID > K2_NATT:
        import p1
        a.label("K2_P1")
        p1.gen_p1(a)
    a.label("K2_END")
    a("s_endpgm")
    return name
```

```python
from common import *
K2_LDS = 81920
K2_NATT = 256
K2_GRID = 512
BOFF = 96.0

def gen_k2(a):
    name = "k2_attn_kernel"
    kernel_header(a, name)
    global K2_GRID
    a(f"s_cmp_ge_u32 s2, {K2_GRID}")
    a("s_cbranch_scc1 K2_END")
    stamp_start(a)
    if "fst" in Opt.EXP: a("s_memrealtime s[96:97]")
    a("s_load_dwordx2 s[8:9], s[0:1], 80")
    a("v_lshrrev_b32 v1, 6, v0")
    a("v_and_b32 v2, 63, v0")
    a("v_readfirstlane_b32 s24, v1")
    if K2_GRID > K2_NATT:
        a(f"s_cmp_ge_u32 s2, {K2_NATT}")
        a("s_cbranch_scc1 K2_P1")
    Q, NEG, S0, S1, O, L, ONES = 8, 16, 32, 48, 64, 80, 84
    KB = [88, 96]; VB = [104, 112]
    vL16, vHi = 3, 4
    NSLOT = 20
    a("s_and_b32 s28, s2, 7")
    a("s_lshr_b32 s29, s2, 3")
    a("s_lshr_b32 s30, s29, 3")
    if "hmap2" in Opt.EXP:
        a("s_and_b32 s25, s28, 1")
        a("s_lshl_b32 s25, s25, 2")
        a("s_add_u32 s25, s25, s30")
        a("s_lshl_b32 s25, s25, 2")
        a("s_lshr_b32 s28, s28, 1")
        a("s_add_u32 s25, s25, s28")
    elif "hmap" in Opt.EXP:
        a("s_lshl_b32 s25, s30, 1")
        a("s_lshr_b32 s31, s28, 2")
        a("s_add_u32 s25, s25, s31")
        a("s_lshl_b32 s25, s25, 2")
        a("s_and_b32 s28, s28, 3")
        a("s_add_u32 s25, s25, s28")
    else:
        a("s_lshl_b32 s28, s28, 2")
        a("s_add_u32 s25, s28, s30")
    a("s_and_b32 s26, s29, 7")
    a(f"v_lshlrev_b32 v{vL16}, 4, v2")
    a("s_lshl_b32 s30, s25, 18")
    a("s_lshl_b32 s31, s24, 12")
    a("s_add_u32 s32, s30, s31")
    a(f"s_add_u32 s32, s32, {hex(WS_KV)}")
    a("s_lshl_b32 s35, s26, 14")
    a("s_lshl_b32 s36, s24, 11")
    a("s_add_u32 s35, s35, s36")
    a("s_lshl_b32 s36, s25, 17")
    a("s_add_u32 s35, s35, s36")
    assert WS_QF == 0
    a("s_add_u32 s33, s31, 0x10000")
    a("s_sub_u32 s34, s31, 0x4000")
    a("s_cmp_lt_u32 s24, 4")
    a("s_cselect_b32 s33, s33, s34")
    a("s_waitcnt lgkmcnt(0)")
    srd(a, 20, 8, WS_END)
    def dma_batch(b):
        base = (8*b) % NSLOT
        if base == 16: a("s_mov_b32 m0, s33")
        elif base == 0: a("s_mov_b32 m0, s31")
        else: a(f"s_add_u32 m0, s31, {hex(base*4096)}")
        if b == 0: so = "s32"
        else:
            a(f"s_add_u32 s34, s32, {hex(b*32768)}")
            so = "s34"
        if b == 0: a("s_nop 0")
        for u in range(4):
            a(f"buffer_load_dwordx4 v{vL16}, s[20:23], {so} offen offset:{u*1024} lds")
    dma_batch(0)
    a(f"buffer_load_dwordx4 {vr(Q,4)}, v{vL16}, s[20:23], s35 offen")
    a(f"buffer_load_dwordx4 {vr(Q+4,4)}, v{vL16}, s[20:23], s35 offen offset:1024")
    dma_batch(1)
    a("v_lshrrev_b32 v6, 4, v2")
    a("v_lshrrev_b32 v7, 2, v2")
    a("v_xor_b32 v6, v6, v7")
    a("v_and_b32 v6, 1, v6")
    a("v_cmp_eq_u32 vcc, 0, v6")
    a("v_mov_b32 v7, 0x3f803f80")
    a(f"v_add_u32 v{vHi}, 0x10000, v{vL16}")
    for i in range(4):
        a(f"v_cndmask_b32 v{ONES+i}, 0, v7, vcc")
    def lds(tile, off):
        sl = tile % NSLOT
        if sl < 16: return f"v{vL16} offset:{sl*4096+off}"
        return f"v{vHi} offset:{(sl-16)*4096+off}"
    def rdK(buf, tile):
        return [f"ds_read_b128 {vr(KB[buf],4)}, {lds(tile, 0)}", f"ds_read_b128 {vr(KB[buf]+4,4)}, {lds(tile, 1024)}"]
    def rdV(buf, tile):
        return [f"ds_read_b128 {vr(VB[buf],4)}, {lds(tile, 2048)}", f"ds_read_b128 {vr(VB[buf]+4,4)}, {lds(tile, 3072)}"]
    a("s_waitcnt vmcnt(4)")
    a("s_barrier")
    stamp_mid(a, 0)
    for r in rdK(0, 0) + rdK(1, 1): a(r)
    a("s_waitcnt lgkmcnt(2)")
    a(f"v_mfma_f32_32x32x16_bf16 {vr(S0,16)}, {vr(KB[0],4)}, {vr(Q,4)}, 0")
    a(f"v_mfma_f32_32x32x16_bf16 {vr(S0,16)}, {vr(KB[0]+4,4)}, {vr(Q+4,4)}, {vr(S0,16)}")
    a("s_nop 15")
    a("s_nop 3")
    a(f"v_max3_f32 v6, v{S0}, v{S0+1}, v{S0+2}")
    for i in range(3, 15, 2):
        a(f"v_max3_f32 v6, v6, v{S0+i}, v{S0+i+1}")
    a(f"v_max_f32 v6, v6, v{S0+15}")
    a("v_mov_b32 v7, v6")
    a("s_nop 1")
    a("v_permlane32_swap_b32 v6, v7")
    a("s_nop 1")
    a("v_max_f32 v6, v6, v7")
    a(f"s_mov_b32 s37, {hex(f32bits(-BOFF))}")
    a("v_sub_f32 v6, s37, v6")
    for i in range(16):
        a(f"v_mov_b32 v{NEG+i}, v6")
    a("s_nop 1")
    a(f"v_mfma_f32_32x32x16_bf16 {vr(S0,16)}, {vr(KB[0],4)}, {vr(Q,4)}, {vr(NEG,16)}")
    a(f"v_mfma_f32_32x32x16_bf16 {vr(S0,16)}, {vr(KB[0]+4,4)}, {vr(Q+4,4)}, {vr(S0,16)}")
    a("s_nop 8")
    SS = [S0, S1]
    def E(cur, i): a(f"v_exp_f32 v{cur+i}, v{cur+i}")
    def C(cur, k): a(f"v_cvt_pk_bf16_f32 v{cur+k}, v{cur+2*k}, v{cur+2*k+1}")
    def PV(u, vb, p, first=False):
        c = "0" if first else vr(O,16)
        a(f"v_mfma_f32_32x32x16_bf16 {vr(O,16)}, {vr(vb+4*u,4)}, {vr(p+4*u,4)}, {c}")
    def LS(u, p, first=False):
        c = "0" if first else vr(L,4)
        a(f"v_mfma_f32_16x16x32_bf16 {vr(L,4)}, {vr(ONES,4)}, {vr(p+4*u,4)}, {c}")
    for i in range(64):
        j = i % 2
        cur, nxt = SS[j], SS[1-j]
        kb_use = KB[1-j]
        vb_use = VB[1-j]
        if i % 8 == 6 and i <= 54:
            a("s_waitcnt vmcnt(0) lgkmcnt(0)")
            a("s_barrier")
            if i + 10 < 64: dma_batch((i + 10) // 8)
        else:
            a("s_waitcnt lgkmcnt(0)")
            if f"xb{i}" in Opt.EXP: a("s_barrier")
        for o in Opt.EXP:
            if o.startswith("eq") and o[2:].isdigit() and i == int(o[2:]):
                a("s_cmp_lt_u32 s24, 4")
                a(f"s_cbranch_scc1 K2_EQ{i}")
                a("s_setprio 1")
                a.label(f"K2_EQ{i}")
        kr = rdK(j, i+2) if i + 2 < 64 else ["", ""]
        vrd = rdV(j, i)
        if i > 0: PV(0, vb_use, nxt, i == 1)
        a(vrd[0]); a(vrd[1])
        E(cur,0); E(cur,1); E(cur,2)
        if i > 0: PV(1, vb_use, nxt)
        a(kr[0]); a(kr[1])
        E(cur,3); C(cur,0); E(cur,4); C(cur,1)
        if i > 0: LS(0, nxt, i == 1)
        E(cur,5)
        if i > 0: LS(1, nxt)
        E(cur,6)
        if i < 63: a(f"v_mfma_f32_32x32x16_bf16 {vr(nxt,16)}, {vr(kb_use,4)}, {vr(Q,4)}, {vr(NEG,16)}")
        C(cur,2); E(cur,7); E(cur,8); C(cur,3)
        if i < 63: a(f"v_mfma_f32_32x32x16_bf16 {vr(nxt,16)}, {vr(kb_use+4,4)}, {vr(Q+4,4)}, {vr(nxt,16)}")
        E(cur,9); E(cur,10); C(cur,4); E(cur,11); E(cur,12); C(cur,5); E(cur,13); E(cur,14); E(cur,15)
        C(cur,6); C(cur,7)
    a("s_waitcnt lgkmcnt(0)")
    PV(0, VB[1], S1); LS(0, S1); PV(1, VB[1], S1); LS(1, S1)
    stamp_mid(a, 1)
    a("s_nop 15")
    a("s_nop 3")
    if any(o.startswith("eq") and o[2:].isdigit() for o in Opt.EXP): a("s_setprio 0")
    a(f"v_mul_f32 v6, 0, v{L}")
    for i in range(16):
        a(f"v_fmac_f32 v6, 0, v{O+i}")
    a("v_cmp_neq_f32 vcc, 0, v6")
    a("s_cmp_lg_u64 vcc, 0")
    a("s_cbranch_scc1 K2_SLOW")
    a.label("K2_FIN")
    a(f"v_rcp_f32 v6, v{L}")
    a("s_nop 0")
    for i in range(16):
        a(f"v_mul_f32 v{O+i}, v{O+i}, v6")
    for i in range(8):
        a(f"v_cvt_pk_bf16_f32 v{O+i}, v{O+2*i}, v{O+2*i+1}")
    a("s_lshl_b32 s35, s26, 3")
    a("s_add_u32 s35, s35, s24")
    a("s_lshl_b32 s35, s35, 16")
    a("s_lshl_b32 s36, s25, 11")
    a("s_add_u32 s35, s35, s36")
    a(f"s_add_u32 s35, s35, {hex(WS_OF)}")
    a(f"buffer_store_dwordx4 {vr(O,4)}, v{vL16}, s[20:23], s35 offen{smod('o')}")
    a(f"buffer_store_dwordx4 {vr(O+4,4)}, v{vL16}, s[20:23], s35 offen offset:1024{smod('o')}")
    if "fuse" in Opt.EXP:
        import kf
        a("s_lshl_b32 s40, s26, 3")
        a("s_add_u32 s40, s40, s24")
        a("s_lshl_b32 s40, s40, 7")
        a("s_lshl_b32 s41, s25, 2")
        a("s_add_u32 s40, s40, s41")
        a(f"s_add_u32 s40, s40, {hex(WS_FO)}")
        a("s_waitcnt vmcnt(0)")
        kf.flag_store(a, "s40")
        if "fst" in Opt.EXP:
            a("s_cmp_lg_u32 s24, 0")
            a("s_cbranch_scc1 K2_NOFS")
            kf.fst_flush(a, "att", 0)
            a.label("K2_NOFS")
    maxend(a, 1, 8)
    if "p2att" in Opt.EXP:
        a("s_cmp_lt_u32 s24, 4")
        a("s_cbranch_scc1 K2_END")
        kf.gen_p2(a, att=True)
    if Opt.STAMP:
        a(f"s_cmp_lg_u32 s24, {7 if 'sw7' in Opt.EXP else 0}")
        a("s_cbranch_scc1 K2_END")
        stamp_end(a, 1, 8, "K2_ST")
    a("s_endpgm")
    a.label("K2_SLOW")
    a(f"s_add_u32 s40, s30, {hex(WS_KV)}")
    a("s_mov_b32 s41, 0")
    a("v_mov_b32 v6, 0xff800000")
    a.label("K2_SLOW1")
    a(f"buffer_load_dwordx4 {vr(KB[0],4)}, v{vL16}, s[20:23], s40 offen")
    a(f"buffer_load_dwordx4 {vr(KB[0]+4,4)}, v{vL16}, s[20:23], s40 offen offset:1024")
    a("s_waitcnt vmcnt(0)")
    a(f"v_mfma_f32_32x32x16_bf16 {vr(S0,16)}, {vr(KB[0],4)}, {vr(Q,4)}, 0")
    a(f"v_mfma_f32_32x32x16_bf16 {vr(S0,16)}, {vr(KB[0]+4,4)}, {vr(Q+4,4)}, {vr(S0,16)}")
    a("s_nop 15")
    a("s_nop 3")
    for i in range(0, 16, 2):
        a(f"v_max3_f32 v6, v6, v{S0+i}, v{S0+i+1}")
    a("s_add_u32 s40, s40, 4096")
    a("s_add_u32 s41, s41, 1")
    a("s_cmp_lt_u32 s41, 64")
    a("s_cbranch_scc1 K2_SLOW1")
    a("v_mov_b32 v7, v6")
    a("s_nop 1")
    a("v_permlane32_swap_b32 v6, v7")
    a("s_nop 1")
    a("v_max_f32 v6, v6, v7")
    a("v_sub_f32 v6, 0, v6")
    for i in range(16):
        a(f"v_mov_b32 v{NEG+i}, v6")
        a(f"v_mov_b32 v{O+i}, 0")
    for i in range(4):
        a(f"v_mov_b32 v{L+i}, 0")
    a(f"s_add_u32 s40, s30, {hex(WS_KV)}")
    a("s_mov_b32 s41, 0")
    a.label("K2_SLOW2")
    a("s_add_u32 s42, s40, 2048")
    a(f"buffer_load_dwordx4 {vr(KB[0],4)}, v{vL16}, s[20:23], s40 offen")
    a(f"buffer_load_dwordx4 {vr(KB[0]+4,4)}, v{vL16}, s[20:23], s40 offen offset:1024")
    a(f"buffer_load_dwordx4 {vr(VB[0],4)}, v{vL16}, s[20:23], s42 offen")
    a(f"buffer_load_dwordx4 {vr(VB[0]+4,4)}, v{vL16}, s[20:23], s42 offen offset:1024")
    a("s_waitcnt vmcnt(0)")
    a(f"v_mfma_f32_32x32x16_bf16 {vr(S0,16)}, {vr(KB[0],4)}, {vr(Q,4)}, {vr(NEG,16)}")
    a(f"v_mfma_f32_32x32x16_bf16 {vr(S0,16)}, {vr(KB[0]+4,4)}, {vr(Q+4,4)}, {vr(S0,16)}")
    a("s_nop 15")
    a("s_nop 3")
    for i in range(16): a(f"v_exp_f32 v{S0+i}, v{S0+i}")
    a("s_nop 0")
    for i in range(8): a(f"v_cvt_pk_bf16_f32 v{S0+i}, v{S0+2*i}, v{S0+2*i+1}")
    a("s_nop 1")
    a(f"v_mfma_f32_32x32x16_bf16 {vr(O,16)}, {vr(VB[0],4)}, {vr(S0,4)}, {vr(O,16)}")
    a(f"v_mfma_f32_16x16x32_bf16 {vr(L,4)}, {vr(ONES,4)}, {vr(S0,4)}, {vr(L,4)}")
    a(f"v_mfma_f32_32x32x16_bf16 {vr(O,16)}, {vr(VB[0]+4,4)}, {vr(S0+4,4)}, {vr(O,16)}")
    a(f"v_mfma_f32_16x16x32_bf16 {vr(L,4)}, {vr(ONES,4)}, {vr(S0+4,4)}, {vr(L,4)}")
    a("s_add_u32 s40, s40, 4096")
    a("s_add_u32 s41, s41, 1")
    a("s_cmp_lt_u32 s41, 64")
    a("s_cbranch_scc1 K2_SLOW2")
    a("s_nop 15")
    a("s_nop 3")
    a("s_branch K2_FIN")
    if K2_GRID > K2_NATT:
        import p1
        a.label("K2_P1")
        p1.gen_p1(a)
    a.label("K2_END")
    a("s_endpgm")
    return name
```

```python
from common import *
def optint(prefix, dflt):
    for o in Opt.EXP:
        if o.startswith(prefix) and o[len(prefix):].isdigit(): return int(o[len(prefix):])
    return dflt

def flag_store(a, soff):
    a("v_mov_b32 v6, 1")
    a("v_mov_b32 v7, 0")
    a("s_mov_b64 exec, 1")
    a(f"buffer_store_dword v6, v7, s[20:23], {soff} offen" + (" sc0 sc1" if "fssys" in Opt.EXP else " sc1"))
    a("s_mov_b64 exec, -1")

_fs = {}
def fst(a, role, base=76):
    if "fst" not in Opt.EXP: return
    n = _fs.get(role, 0); _fs[role] = n + 1
    assert base + 2*n + 1 < 96
    a(f"s_memrealtime s[{base+2*n}:{base+2*n+1}]")
def fst_flush(a, role, ridx, base=76):
    if "fst" not in Opt.EXP: return
    n = _fs.get(role, 0)
    a("s_waitcnt vmcnt(0)")
    a("s_memrealtime s[98:99]")
    a("s_waitcnt lgkmcnt(0)")
    a("v_mov_b32 v1, 0")
    a("v_writelane_b32 v1, s96, 0")
    for i in range(n): a(f"v_writelane_b32 v1, s{base+2*i}, {i+1}")
    a(f"v_writelane_b32 v1, s98, {n+1}")
    a("s_lshl_b32 s91, s2, 7")
    a(f"s_add_u32 s91, s91, {hex(WS_STAMP + 0x80000 + ridx*64)}")
    a("v_mbcnt_lo_u32_b32 v13, -1, 0")
    a("v_mbcnt_hi_u32_b32 v13, -1, v13")
    a("v_lshlrev_b32 v13, 2, v13")
    a("s_mov_b64 exec, 0xffff")
    a("buffer_store_dword v1, v13, s[20:23], s91 offen")
    a("s_mov_b64 exec, -1")

def tile_ids(a):
    a("s_and_b32 s28, s25, 7")
    a("s_lshr_b32 s29, s25, 3")
    a("s_lshr_b32 s30, s28, 1")
    a("s_lshl_b32 s30, s30, 2")
    a("s_and_b32 s31, s29, 3")
    a("s_add_u32 s36, s30, s31")
    a("s_and_b32 s30, s28, 1")
    a("s_lshl_b32 s30, s30, 3")
    a("s_lshr_b32 s58, s29, 2")
    a("s_add_u32 s26, s30, s58")
    if "xrot" in Opt.EXP:
        a("s_getreg_b32 s58, hwreg(HW_REG_XCC_ID)")
        a("s_xor_b32 s58, s58, s25")
        a("s_and_b32 s58, s58, 1")
        a("s_lshl_b32 s58, s58, 2")
    elif "frot" not in Opt.EXP: a("s_mov_b32 s58, 0")

def gen_tail(a):
    a("s_load_dwordx2 s[4:5], s[0:1], 16")
    a("s_load_dwordx2 s[6:7], s[0:1], 64")
    for o in Opt.EXP:
        if o.startswith("p2prio"): a(f"s_setprio {o[6:]}")
    a("s_waitcnt vmcnt(0)")
    fst(a, "all", 72)
    a("s_barrier")
    a("s_cmp_lg_u32 s24, 0")
    a("s_cbranch_scc1 KF_NOFLAG")
    a("s_lshl_b32 s33, s26, 5")
    a("s_add_u32 s33, s33, s27")
    a("s_lshl_b32 s33, s33, 2")
    a(f"s_add_u32 s33, s33, {hex(WS_FZ)}")
    flag_store(a, "s33")
    a.label("KF_NOFLAG")
    a("v_lshlrev_b32 v3, 4, v2")
    a("s_cmp_ge_u32 s24, 4")
    a("s_cbranch_scc1 KF_WO")
    if "p2att" in Opt.EXP:
        a("s_waitcnt lgkmcnt(0)")
        a("s_cmp_lg_u32 s24, 0")
        a("s_cbranch_scc1 KF_WST")
        gen_poller(a)
    else:
        gen_p2(a)
    gen_wo(a)

def p2_consts(a, FR, FI, TC, TS, U, part=3):
    a("v_and_b32 v7, 31, v2")
    a("v_lshrrev_b32 v11, 5, v2")
    a("v_cvt_f32_u32 v9, v7")
    a("v_lshlrev_b32 v10, 2, v11")
    a("v_cvt_f32_u32 v10, v10")
    if part & 1:
        a(f"v_mul_f32 v4, {hex(f32bits(1.0/32))}, v9")
        a("v_mul_f32 v5, v10, v4")
        for r in range(16):
            bb = 8*(r//4) + r % 4
            a(f"v_fmamk_f32 v{U+r}, v4, {hex(f32bits(float(bb)))}, v5")
            a(f"v_fract_f32 v{U+r}, v{U+r}")
        for r in range(16):
            a(f"v_cos_f32 v{U+16+r}, v{U+r}")
            a(f"v_sin_f32 v{U+r}, -v{U+r}")
        a("s_nop 0")
        for i in range(8):
            a(f"v_cvt_pk_bf16_f32 v{FR+i}, v{U+16+2*i}, v{U+16+2*i+1}")
            a(f"v_cvt_pk_bf16_f32 v{FI+i}, v{U+2*i}, v{U+2*i+1}")
    if part & 2:
        a(f"v_mul_f32 v9, {hex(f32bits(1.0/1024))}, v9")
        a("v_mul_f32 v10, v10, v9")
        for r in range(16):
            bb = 8*(r//4) + r % 4
            a(f"v_fmamk_f32 v{TS+r}, v9, {hex(f32bits(float(bb)))}, v10")
        for r in range(16):
            a(f"v_cos_f32 v{TC+r}, v{TS+r}")
            a(f"v_sin_f32 v{TS+r}, -v{TS+r}")
        a("s_nop 0")

def addr_tables(a, B):
    a("v_lshrrev_b32 v7, 5, v2")
    a("v_lshrrev_b32 v8, 4, v2")
    a("v_bfe_u32 v9, v2, 2, 2")
    a("v_and_b32 v10, 3, v2")
    a("v_lshlrev_b32 v11, 1, v7")
    a("v_xor_b32 v11, v11, v10")
    a("v_lshlrev_b32 v11, 4, v11")
    a(f"v_lshrrev_b32 v{B}, 2, v2")
    a(f"v_lshl_add_u32 v{B}, v{B}, 6, v11")
    a(f"v_lshl_add_u32 v{B+1}, v8, 3, v9")
    a(f"v_lshlrev_b32 v{B+1}, 6, v{B+1}")
    a("v_and_b32 v11, 1, v8")
    a(f"v_lshl_add_u32 v{B+1}, v11, 5, v{B+1}")
    a(f"v_lshl_add_u32 v{B+1}, v10, 3, v{B+1}")
    a(f"v_lshl_add_u32 v{B+3}, v7, 3, v9")
    a(f"v_lshlrev_b32 v{B+3}, 6, v{B+3}")
    a(f"v_lshl_add_u32 v{B+3}, v11, 5, v{B+3}")
    a(f"v_lshl_add_u32 v{B+3}, v10, 3, v{B+3}")
    a(f"v_lshl_add_u32 v{B+4}, v7, 2, v9")
    a(f"v_lshlrev_b32 v{B+4}, 6, v{B+4}")
    a(f"v_lshl_add_u32 v{B+4}, v11, 5, v{B+4}")
    a(f"v_lshl_add_u32 v{B+4}, v10, 3, v{B+4}")
    a(f"v_and_b32 v{B+5}, 15, v2")
    a(f"v_lshlrev_b32 v{B+5}, 6, v{B+5}")
    a(f"v_lshl_add_u32 v{B+5}, v7, 4, v{B+5}")
    a(f"v_lshl_add_u32 v{B+5}, v11, 5, v{B+5}")
    a(f"v_mov_b32 v{B+6}, 0")
    a(f"v_mov_b32 v{B+7}, 0")
    a("v_and_b32 v9, 7, v2")
    a(f"v_lshlrev_b32 v{B+2}, 12, v9")
    a("v_bfe_u32 v10, v2, 3, 1")
    a(f"v_lshl_add_u32 v{B+2}, v10, 11, v{B+2}")
    a("v_and_b32 v10, 3, v2")
    a(f"v_lshl_add_u32 v{B+2}, v10, 6, v{B+2}")
    a("v_bfe_u32 v10, v2, 2, 1")
    a(f"v_lshl_add_u32 v{B+2}, v10, 5, v{B+2}")
    a(f"v_lshl_add_u32 v{B+2}, v8, 3, v{B+2}")

def k1_table(a):
    a("s_cmp_eq_u32 s2, 9")
    a("s_cbranch_scc0 K1_NOTAB")
    a(f"s_cmp_ge_u32 s24, {3 if 'p1d' in Opt.EXP else 2}")
    a("s_cbranch_scc1 K1_NOTAB")
    a("v_lshlrev_b32 v6, 4, v2")
    if "p1d" in Opt.EXP:
        a("s_cmp_eq_u32 s24, 2")
        a("s_cbranch_scc0 K1_TAB0")
        addr_tables(a, 112)
        a(f"s_mov_b32 s36, {hex(WS_TAB + 12288)}")
        a(f"buffer_store_dwordx4 {vr(112,4)}, v6, s[20:23], s36 offen")
        a(f"buffer_store_dwordx4 {vr(116,4)}, v6, s[20:23], s36 offen offset:1024")
        a("s_branch K1_NOTAB")
        a.label("K1_TAB0")
    a("s_cmp_eq_u32 s24, 1")
    a("s_cbranch_scc1 K1_TAB1")
    p2_consts(a, 112, 120, 160, 176, 128, part=1)
    a(f"s_mov_b32 s36, {hex(WS_TAB)}")
    for q in range(4):
        a(f"buffer_store_dwordx4 {vr(112+4*q,4)}, v6, s[20:23], s36 offen offset:{q*1024}")
    a("s_branch K1_NOTAB")
    a.label("K1_TAB1")
    p2_consts(a, 112, 120, 160, 176, 128, part=2)
    a(f"s_mov_b32 s36, {hex(WS_TAB + 4096)}")
    for q in range(8):
        if q == 4: a("s_add_u32 s36, s36, 4096")
        a(f"buffer_store_dwordx4 {vr(160+4*q,4)}, v6, s[20:23], s36 offen offset:{(q%4)*1024}")
    a.label("K1_NOTAB")

def gen_p2(a, att=False):
    if att:
        a("s_load_dwordx2 s[6:7], s[0:1], 64")
        a("s_mov_b32 s25, s2")
        a("s_sub_u32 s24, s24, 4")
        a("v_lshlrev_b32 v3, 4, v2")
    a("s_lshl_b32 s35, s25, 2")
    a("s_add_u32 s35, s35, s24")
    a("s_lshl_b32 s44, s24, 12")
    a(f"s_add_u32 s44, s44, {hex(4*4096 if att else 0x10000)}")
    FR, FI = 16, 24
    TC, TS = 96, 112
    U = 32
    ZA = [80, 4]
    T = 32
    D = 64
    if "ktab" in Opt.EXP:
        a(f"s_mov_b32 s45, {hex(WS_TAB)}")
        for q in range(12):
            r = (FR + 4*q) if q < 4 else (TC + 4*(q-4))
            if q % 4 == 0 and q: a("s_add_u32 s45, s45, 4096")
            a(f"buffer_load_dwordx4 {vr(r,4)}, v3, s[20:23], s45 offen offset:{(q%4)*1024}")
        if "p1d" not in Opt.EXP: a("v_lshrrev_b32 v11, 5, v2")
    else:
        p2_consts(a, FR, FI, TC, TS, U)
    if "p1d" in Opt.EXP:
        a(f"s_mov_b32 s45, {hex(WS_TAB + 13312)}")
        a("buffer_load_dwordx2 v[12:13], v3, s[20:23], s45 offen")
    else:
        a("v_bfe_u32 v12, v2, 2, 2")
        a("v_lshlrev_b32 v13, 2, v11")
        a("v_add_u32 v13, v13, v12")
        a("v_lshlrev_b32 v13, 6, v13")
        a("v_bfe_u32 v12, v2, 4, 1")
        a("v_lshlrev_b32 v12, 5, v12")
        a("v_add_u32 v13, v13, v12")
        a("v_and_b32 v12, 3, v2")
        a("v_lshlrev_b32 v12, 3, v12")
        a("v_add_u32 v13, v13, v12")
        a("v_add_u32 v13, s44, v13")
        a("v_and_b32 v14, 15, v2")
        a("v_lshlrev_b32 v14, 6, v14")
        a("v_lshlrev_b32 v12, 4, v11")
        a("v_add_u32 v14, v14, v12")
        a("v_bfe_u32 v12, v2, 4, 1")
        a("v_lshlrev_b32 v12, 5, v12")
        a("v_add_u32 v14, v14, v12")
    a("v_add_u32 v15, s44, v3")
    a("s_waitcnt lgkmcnt(0)")
    srd(a, 16, 6, 2048*2048*2)
    if not att:
        a("s_cmp_lg_u32 s24, 0")
        a("s_cbranch_scc1 KF_ZOK")
    a("s_bfe_u32 s45, s25, 0x30001")
    a("s_lshl_b32 s45, s45, 7")
    a(f"s_add_u32 s45, s45, {hex(WS_FZ)}")
    a("v_and_b32 v4, 31, v2")
    a("v_lshlrev_b32 v4, 2, v4")
    a.label("KF_ZPOLL")
    a("buffer_load_dword v5, v4, s[20:23], s45 offen sc1")
    a("s_waitcnt vmcnt(0)")
    a("v_cmp_ne_u32 vcc, 1, v5")
    a("s_cmp_eq_u64 vcc, 0")
    a("s_cbranch_scc1 KF_ZOK")
    a(f"s_sleep {optint('zsl', 16)}")
    a("s_branch KF_ZPOLL")
    a.label("KF_ZOK")
    if not att:
        fst(a, "p")
        a("s_barrier")
    if optint("p2act", 0): a(f"s_setprio {optint('p2act', 0)}")
    if "p1d" in Opt.EXP:
        a("s_waitcnt vmcnt(0)")
        a("v_mov_b32 v14, v13")
        a("v_add_u32 v13, s44, v12")
    a.label("KF_P2T")
    a("s_lshl_b32 s45, s35, 12")
    a("s_cmp_eq_u32 s35, 1024")
    a("s_cselect_b32 s45, 2048, s45")
    a(f"s_add_u32 s45, s45, {hex(WS_Z)}")
    a("s_lshl_b32 s46, s35, 12")
    a(f"s_add_u32 s46, s46, {hex(WS_Z + 2048)}")
    a("s_cmp_eq_u32 s35, 1024")
    a("s_cselect_b32 s46, s45, s46")
    a(f"buffer_load_dwordx4 {vr(U,4)}, v3, s[20:23], s45 offen sc1")
    a(f"buffer_load_dwordx4 {vr(U+4,4)}, v3, s[20:23], s45 offen offset:1024 sc1")
    a(f"buffer_load_dwordx4 {vr(U+8,4)}, v3, s[20:23], s46 offen sc1")
    a(f"buffer_load_dwordx4 {vr(U+12,4)}, v3, s[20:23], s46 offen offset:1024 sc1")
    for q in range(4):
        a(f"s_waitcnt vmcnt({3-q})")
        a(f"ds_write_b128 v15, {vr(U+4*q,4)} offset:{q*1024}")
    a("s_waitcnt lgkmcnt(0)")
    if "fst2" in Opt.EXP: fst(a, "q", 60)
    for z in range(2):
        for ks in range(2):
            b = ZA[z] + ks*4
            a(f"ds_read_b64_tr_b16 {vr(b,2)}, v13 offset:{z*2048+ks*1024}")
            a(f"ds_read_b64_tr_b16 {vr(b+2,2)}, v13 offset:{z*2048+ks*1024+512}")
    a("s_and_b32 s45, s35, 1023")
    a("s_cmp_eq_u32 s45, 0")
    a("s_cselect_b32 s45, 0, -1")
    a("s_waitcnt lgkmcnt(0)")
    for i in range(8):
        a(f"v_and_b32 v{ZA[1]+i}, s45, v{ZA[1]+i}")
    a("s_nop 1")
    for z in range(2):
        for f, F in enumerate((FR, FI)):
            d = vr(U + (2*z+f)*16, 16)
            a(f"v_mfma_f32_32x32x16_bf16 {d}, {vr(ZA[z],4)}, {vr(F,4)}, 0")
            a(f"v_mfma_f32_32x32x16_bf16 {d}, {vr(ZA[z]+4,4)}, {vr(F+4,4)}, {d}")
    a("s_nop 15")
    a("s_nop 3")
    Uar, Uai, Ubr, Ubi = U, U+16, U+32, U+48
    if "fst2" in Opt.EXP: fst(a, "q", 60)
    if "twp" in Opt.EXP: a("s_setprio 1")
    if "p2pk" in Opt.EXP:
        for r in range(0, 16, 2):
            c, s = vr(TC+r,2), vr(TS+r,2)
            ar_, ai, br, bi = vr(Uar+r,2), vr(Uai+r,2), vr(Ubr+r,2), vr(Ubi+r,2)
            a(f"v_pk_mul_f32 v[4:5], {ai}, {s}")
            a(f"v_pk_mul_f32 v[6:7], {ai}, {c}")
            a(f"v_pk_mul_f32 v[8:9], {bi}, {s}")
            a(f"v_pk_mul_f32 v[10:11], {bi}, {c}")
            a(f"v_pk_fma_f32 {ai}, {ar_}, {s}, v[6:7] neg_lo:[1,0,1] neg_hi:[1,0,1]")
            a(f"v_pk_fma_f32 {ar_}, {ar_}, {c}, v[4:5] neg_lo:[0,0,1] neg_hi:[0,0,1]")
            a(f"v_pk_fma_f32 {bi}, {br}, {s}, v[10:11]")
            a(f"v_pk_fma_f32 {br}, {br}, {c}, v[8:9] neg_lo:[0,0,1] neg_hi:[0,0,1]")
    else:
        for r in range(16):
            c, s = TC+r, TS+r
            a(f"v_mul_f32 v4, v{Uai+r}, v{s}")
            a(f"v_mul_f32 v5, v{Uai+r}, v{c}")
            a(f"v_fma_f32 v{Uai+r}, -v{Uar+r}, v{s}, -v5")
            a(f"v_fma_f32 v{Uar+r}, v{Uar+r}, v{c}, -v4")
            a(f"v_mul_f32 v4, v{Ubi+r}, v{s}")
            a(f"v_mul_f32 v5, v{Ubi+r}, v{c}")
            a(f"v_fma_f32 v{Ubi+r}, v{Ubr+r}, v{s}, v5")
            a(f"v_fma_f32 v{Ubr+r}, v{Ubr+r}, v{c}, -v4")
    for k, src in enumerate((Uar, Uai, Ubi, Ubr)):
        for i in range(8):
            a(f"v_cvt_pk_bf16_f32 v{T+8*k+i}, v{src+2*i}, v{src+2*i+1}")
    if "twp" in Opt.EXP: a("s_setprio 0")
    if "fst2" in Opt.EXP: fst(a, "q", 60)
    a("s_nop 1")
    a(f"v_mfma_f32_32x32x16_bf16 {vr(D,16)}, {vr(T,4)}, {vr(FR,4)}, 0")
    a(f"v_mfma_f32_32x32x16_bf16 {vr(D+16,16)}, {vr(T+16,4)}, {vr(FR,4)}, 0")
    a(f"v_mfma_f32_32x32x16_bf16 {vr(D,16)}, {vr(T+4,4)}, {vr(FR+4,4)}, {vr(D,16)}")
    a(f"v_mfma_f32_32x32x16_bf16 {vr(D+16,16)}, {vr(T+20,4)}, {vr(FR+4,4)}, {vr(D+16,16)}")
    a(f"v_mfma_f32_32x32x16_bf16 {vr(D,16)}, {vr(T+8,4)}, {vr(FI,4)}, {vr(D,16)}")
    a(f"v_mfma_f32_32x32x16_bf16 {vr(D+16,16)}, {vr(T+24,4)}, {vr(FI,4)}, {vr(D+16,16)}")
    a(f"v_mfma_f32_32x32x16_bf16 {vr(D,16)}, {vr(T+12,4)}, {vr(FI+4,4)}, {vr(D,16)}")
    a(f"v_mfma_f32_32x32x16_bf16 {vr(D+16,16)}, {vr(T+28,4)}, {vr(FI+4,4)}, {vr(D+16,16)}")
    a("s_lshl_b32 s45, s35, 12")
    a("s_add_u32 s45, s45, 2048")
    a("s_sub_u32 s46, 2048, s35")
    a("s_and_b32 s46, s46, 2047")
    a("s_lshl_b32 s46, s46, 12")
    a("s_add_u32 s46, s46, 2048")
    a("s_nop 15")
    a("s_nop 3")
    Y1, Y2 = U, U+16
    if "twp2" in Opt.EXP: a("s_setprio 1")
    if "fst2" in Opt.EXP: fst(a, "q", 60)
    if "p2pk" in Opt.EXP:
        for r in range(0, 16, 2):
            a(f"v_pk_add_f32 {vr(Y1+r,2)}, {vr(D+r,2)}, {vr(D+16+r,2)} neg_lo:[0,1] neg_hi:[0,1]")
            a(f"v_pk_add_f32 {vr(Y2+r,2)}, {vr(D+r,2)}, {vr(D+16+r,2)}")
    else:
        for r in range(16):
            a(f"v_sub_f32 v{Y1+r}, v{D+r}, v{D+16+r}")
            a(f"v_add_f32 v{Y2+r}, v{D+r}, v{D+16+r}")
    for Y, so in ((Y1, "s45"), (Y2, "s46")):
        for i in range(8):
            a(f"v_cvt_pk_bf16_f32 v{Y+i}, v{Y+2*i}, v{Y+2*i+1}")
        a("s_nop 1")
        a(f"v_permlane32_swap_b32 v{Y}, v{Y+2}")
        a(f"v_permlane32_swap_b32 v{Y+1}, v{Y+3}")
        a(f"v_permlane32_swap_b32 v{Y+4}, v{Y+6}")
        a(f"v_permlane32_swap_b32 v{Y+5}, v{Y+7}")
        a("s_nop 1")
        for i in range(4):
            a(f"v_permlane16_swap_b32 v{Y+i}, v{Y+4+i}")
        a("s_nop 1")
        a(f"buffer_store_dwordx4 {vr(Y,4)}, v14, s[16:19], {so} offen{smod('y')}")
        a(f"buffer_store_dwordx4 {vr(Y+4,4)}, v14, s[16:19], {so} offen offset:1024{smod('y')}")
    if "twp2" in Opt.EXP: a("s_setprio 0")
    a("s_cmp_lg_u32 s35, 0")
    a("s_cbranch_scc1 KF_P2E")
    a("s_mov_b32 s35, 1024")
    a("s_branch KF_P2T")
    a.label("KF_P2E")
    if att:
        a("s_endpgm")
        return
    if "bp" in Opt.EXP: a("s_barrier")
    a("s_cmp_lg_u32 s24, 0")
    a(f"s_cbranch_scc1 {'KF_WST' if 'wst' in Opt.EXP else 'K2_END'}")
    fst(a, "p")
    gen_poller(a)

def gen_poller(a):
    a(f"s_setprio {optint('plprio', 3)}")
    tile_ids(a)
    a("v_lshlrev_b32 v4, 3, v2")
    a("s_lshl_b32 s45, s36, 9")
    a(f"s_add_u32 s45, s45, {hex(WS_FO)}")
    a("s_mov_b32 s52, 0x00030003")
    a("s_mov_b32 s53, 0x00030003")
    a("s_mov_b64 s[50:51], 0")
    a("s_mov_b32 s40, 0")
    if "opf" in Opt.EXP:
        a("s_lshr_b32 s54, s29, 2")
        a("s_lshl_b32 s55, s36, 18")
        a("s_lshl_b32 s41, s54, 10")
        a("s_add_u32 s55, s55, s41")
        a(f"s_add_u32 s55, s55, {hex(WS_OF)}")
        a("v_bfe_u32 v5, v2, 3, 2")
        a("v_lshlrev_b32 v5, 16, v5")
        a("v_and_b32 v6, 7, v2")
        a("v_lshlrev_b32 v6, 7, v6")
        a("v_add_u32 v5, v5, v6")
        a("s_mov_b32 s54, 0")
    a("s_lshl_b32 s41, s58, 1")
    a("s_lshl_b64 s[46:47], s[52:53], s41")
    a.label("KF_PL0")
    a("s_add_u32 s41, s40, s58")
    a("s_add_u32 s41, s41, 1")
    a("s_and_b32 s41, s41, 7")
    a("s_lshl_b32 s41, s41, 1")
    a("s_lshl_b64 s[48:49], s[52:53], s41")
    a("s_or_b64 s[46:47], s[46:47], s[48:49]")
    a("s_mov_b32 s42, 0")
    if "b0g" in Opt.EXP:
        a("s_cmp_eq_u32 s40, 0")
        a("s_cbranch_scc1 KF_PL2")
    if "nos0" in Opt.EXP:
        a("s_cmp_eq_u64 s[50:51], 0")
        a("s_cbranch_scc0 KF_PL1")
        a("s_cmp_lt_u32 s40, 2")
        a("s_cbranch_scc1 KF_PL5")
    a.label("KF_PL1")
    a("s_and_b64 s[48:49], s[50:51], s[46:47]")
    a("s_cmp_eq_u64 s[48:49], s[46:47]")
    if "opf" in Opt.EXP:
        a("s_cbranch_scc0 KF_PL4")
        a("s_cmp_eq_u32 s54, 0xff")
        a("s_cbranch_scc1 KF_PL2")
        a("s_cmp_lg_u32 s42, 0")
        a("s_cbranch_scc1 KF_PL2")
        a("s_branch KF_PL5")
        a.label("KF_PL4")
    else:
        a("s_cbranch_scc1 KF_PL2")
    a("s_cmp_eq_u64 s[50:51], 0")
    a("s_cbranch_scc0 KF_PL3")
    a(f"s_sleep {optint('fsl', 8)}")
    a.label("KF_PL3")
    a(f"s_sleep {optint('psl', 1)}")
    a.label("KF_PL5")
    a("s_mov_b32 s42, 1")
    a("buffer_load_dwordx2 v[8:9], v4, s[20:23], s45 offen" + (" sc0 sc1" if "pmsys" in Opt.EXP else " sc1"))
    a("s_waitcnt vmcnt(0)")
    a("v_and_b32 v8, v8, v9")
    a("v_cmp_eq_u32 vcc, 1, v8")
    a("s_mov_b64 s[50:51], vcc")
    if "opf" in Opt.EXP:
        a("s_mov_b32 s43, 0")
        a.label("KF_PF0")
        a("s_lshl_b32 s41, s43, 1")
        a("s_lshl_b64 s[56:57], s[52:53], s41")
        a("s_and_b64 s[48:49], s[50:51], s[56:57]")
        a("s_cmp_eq_u64 s[48:49], s[56:57]")
        a("s_cbranch_scc0 KF_PF1")
        a("s_bitcmp1_b32 s54, s43")
        a("s_cbranch_scc1 KF_PF1")
        a("s_bitset1_b32 s54, s43")
        a("s_lshl_b32 s41, s43, 13")
        a("s_add_u32 s41, s41, s55")
        a("buffer_load_dword v10, v5, s[20:23], s41 offen sc1")
        a.label("KF_PF1")
        a("s_add_u32 s43, s43, 1")
        a("s_cmp_lt_u32 s43, 8")
        a("s_cbranch_scc1 KF_PF0")
    a("s_branch KF_PL1")
    a.label("KF_PL2")
    a("s_barrier")
    a("s_add_u32 s40, s40, 1")
    a("s_cmp_lt_u32 s40, 7")
    a("s_cbranch_scc1 KF_PL0")
    if "fst" in Opt.EXP:
        a("s_mov_b32 s80, s72")
        if "p2att" in Opt.EXP:
            a("s_mov_b32 s76, s72"); a("s_mov_b32 s78, s72")
        _fs["p"] = 3
        if "fst2" in Opt.EXP:
            for i in range(4): a(f"s_mov_b32 s{82+2*i}, s{60+2*i}")
            _fs["p"] = 7
        fst_flush(a, "p", 0)
    a("s_endpgm")

def w_voffsets(a):
    a("v_lshrrev_b32 v6, 3, v2")
    a("v_lshlrev_b32 v6, 11, v6")
    a("v_bfe_u32 v4, v2, 2, 1")
    a("v_bfe_u32 v5, v2, 4, 1")
    a("v_xor_b32 v4, v4, v5")
    a("v_lshlrev_b32 v4, 6, v4")
    a("v_add_u32 v6, v6, v4")
    a("v_and_b32 v4, 3, v2")
    a("v_lshlrev_b32 v4, 4, v4")
    a("v_add_u32 v6, v6, v4")
    for i in range(1, 4):
        a(f"v_add_u32 v{6+i}, {i*(16384-1024)}, v6")

def gen_wst(a):
    a.label("KF_WST")
    tile_ids(a)
    w_voffsets(a)
    srd(a, 12, 4, 1024*1024*2)
    a("s_add_u32 s38, s58, s24")
    a("s_add_u32 s38, s38, 4")
    a("s_and_b32 s38, s38, 7")
    a("s_lshl_b32 s38, s38, 18")
    a("s_lshl_b32 s39, s26, 7")
    a("s_add_u32 s38, s38, s39")
    for q in range(4):
        a(f"s_add_u32 s{60+q}, s38, {hex(q << 16)}")
    for q in range(4):
        for i in range(4):
            a(f"buffer_load_dwordx4 {vr(32+16*q+4*i,4)}, v{6+i}, s[12:15], s{60+q} offen offset:{i*1024}")
    a("s_sub_u32 s38, s24, 1")
    a("s_lshl_b32 s38, s38, 14")
    a("v_add_u32 v15, s38, v3")
    a("s_add_u32 s40, s24, 2")
    a.label("KF_WST1")
    a("s_barrier")
    a("s_sub_u32 s40, s40, 1")
    a("s_cmp_lg_u32 s40, 0")
    a("s_cbranch_scc1 KF_WST1")
    a("s_waitcnt vmcnt(0)")
    for part, (q0, q1) in enumerate(((0, 6), (6, 11), (11, 16))):
        if part: a("s_barrier")
        for q in range(q0, q1):
            a(f"ds_write_b128 v15, {vr(32+4*q,4)} offset:{q*1024}")
    a("s_waitcnt lgkmcnt(0)")
    a("s_endpgm")

def gen_wo(a):
    if "wst" in Opt.EXP: gen_wst(a)
    a.label("KF_WO")
    a("s_sub_u32 s24, s24, 4")
    for o in Opt.EXP:
        if o.startswith("woprio"): a(f"s_setprio {o[6:]}")
    tile_ids(a)
    w_voffsets(a)
    ACC = 16; OF = 48; WF = 96
    NOF = 12; NWF = 4
    VO = 10
    a(f"v_add_u32 v{VO}, 4096, v3")
    a("s_lshl_b32 s34, s36, 2")
    a("s_add_u32 s34, s34, s24")
    a("s_lshl_b32 s35, s34, 16")
    a(f"s_add_u32 s35, s35, {hex(WS_OF)}")
    a("s_lshl_b32 s37, s24, 16")
    a("s_lshl_b32 s38, s26, 7")
    a("s_add_u32 s37, s37, s38")
    a("s_lshl_b32 s57, s24, 12")
    for g in range(8):
        a(f"s_add_u32 s38, s58, {g}")
        a("s_and_b32 s38, s38, 7")
        a("s_lshl_b32 s39, s38, 13")
        a(f"s_add_u32 s{60+g}, s35, s39")
        a("s_lshl_b32 s39, s38, 18")
        a(f"s_add_u32 s{68+g}, s37, s39")
    a("s_waitcnt lgkmcnt(0)")
    srd(a, 12, 4, 1024*1024*2)
    srd(a, 16, 6, 2048*2048*2)
    NS = 5
    DIST = optint("fd", NOF - 1)
    assert DIST < NOF
    issued = []
    def oload(j):
        v = "v3" if (j & 7) < 4 else f"v{VO}"
        a(f"buffer_load_dwordx4 {vr(OF+4*(j%NOF),4)}, {v}, s[20:23], s{60+(j>>3)} offen offset:{(j&3)*1024} sc1")
        issued.append(("O", j))
    m0_for = [None]
    def wpiece(m, i):
        if m0_for[0] != m:
            a(f"s_add_u32 m0, s57, {hex((m % NS)*16384)}")
            a("s_nop 0")
            m0_for[0] = m
        a(f"buffer_load_dwordx4 v{6+i}, s[12:15], s{68+m} offen offset:{i*1024} lds")
        issued.append(("W", m))
    def after(kind, idx):
        L = [i for i, x in enumerate(issued) if x == (kind, idx)]
        if not L: return 63
        return len(issued) - 1 - max(L)
    LD = 3
    P2ATT = "p2att" in Opt.EXP
    for m in range(5 if P2ATT else 4):
        for i in range(4): wpiece(m, i)
    if "wpf" in Opt.EXP:
        a("v_lshlrev_b32 v12, 11, v2")
        a("s_lshl_b32 s38, s24, 18")
        a("s_lshl_b32 s39, s26, 7")
        a("s_add_u32 s38, s38, s39")
        a(f"s_add_u32 s38, s38, {hex(512*2048)}")
        a("s_add_u32 s39, s38, 0x20000")
        a("buffer_load_dword v15, v12, s[12:15], s38 offen")
        a("buffer_load_dword v15, v12, s[12:15], s39 offen")
    wl = [4] if "wst" in Opt.EXP else [4, 5, 6, 7]
    if P2ATT: wl = wl[1:]
    def wt(m):
        if m == 4 and "w4e" in Opt.EXP: return optint("w4t", 10) + 0.5
        return 8*m - LD - 0.5 - optint("fw", 0)
    queue = sorted([(wt(m), "W", m, i) for m in wl for i in range(4)] + [(j, "O", j, 0) for j in range(64)])
    P0, RATE = optint("fo", 12), optint("fr", 3)
    def pump(n, step, bars_done):
        while n > 0 and queue:
            t, kind, idx, i = queue[0]
            if kind == "O" and (idx > step + DIST or (idx >> 3) > bars_done + 1): break
            if kind == "W" and (t > step + DIST or (idx - NS + 2 > bars_done and idx > 4)): break
            queue.pop(0)
            if kind == "O": oload(idx)
            else: wpiece(idx, i)
            n -= 1
    a("v_lshrrev_b32 v11, 5, v2")
    a("v_bfe_u32 v12, v2, 2, 2")
    a("v_lshlrev_b32 v13, 2, v11")
    a("v_add_u32 v13, v13, v12")
    a("v_lshlrev_b32 v13, 7, v13")
    a("v_lshrrev_b32 v12, 1, v12")
    a("v_lshlrev_b32 v12, 6, v12")
    a("v_add_u32 v13, v13, v12")
    a("v_bfe_u32 v12, v2, 4, 1")
    a("v_lshlrev_b32 v12, 5, v12")
    a("v_add_u32 v13, v13, v12")
    a("v_and_b32 v12, 3, v2")
    a("v_lshlrev_b32 v12, 3, v12")
    a("v_add_u32 v13, v13, v12")
    a("v_xor_b32 v14, 64, v13")
    a("v_add_u32 v4, 0x10000, v13")
    a("v_add_u32 v5, 0x10000, v14")
    def wread(jj):
        L = []
        sl = (jj >> 3) % NS
        off = sl*16384 + (jj & 7)*2048
        for nt in range(2):
            b = WF + (jj % NWF)*8 + nt*4
            v = (13+nt) if sl < 4 else (4+nt)
            o = off if sl < 4 else off - 65536
            L.append(f"ds_read_b64_tr_b16 {vr(b,2)}, v{v} offset:{o}")
            L.append(f"ds_read_b64_tr_b16 {vr(b+2,2)}, v{v} offset:{o+1024}")
        return L
    if not P2ATT: a("s_barrier")
    a("s_waitcnt vmcnt(0)")
    if "bp" in Opt.EXP: a("s_barrier")
    if "b0g" in Opt.EXP:
        a("s_cmp_lg_u32 s24, 0")
        a("s_cbranch_scc1 KF_G2")
        a("v_lshlrev_b32 v15, 3, v2")
        a("s_lshr_b32 s45, s34, 2")
        a("s_lshl_b32 s45, s45, 9")
        a(f"s_add_u32 s45, s45, {hex(WS_FO)}")
        a("s_mov_b32 s52, 0x00030003")
        a("s_mov_b32 s53, 0x00030003")
        a("s_lshl_b32 s41, s58, 1")
        a("s_lshl_b64 s[46:47], s[52:53], s41")
        a("s_add_u32 s41, s58, 1")
        a("s_and_b32 s41, s41, 7")
        a("s_lshl_b32 s41, s41, 1")
        a("s_lshl_b64 s[48:49], s[52:53], s41")
        a("s_or_b64 s[46:47], s[46:47], s[48:49]")
        a.label("KF_G0")
        a("buffer_load_dwordx2 v[16:17], v15, s[20:23], s45 offen sc1")
        a("s_waitcnt vmcnt(0)")
        a("v_and_b32 v16, v16, v17")
        a("v_cmp_eq_u32 vcc, 1, v16")
        a("s_and_b64 s[48:49], vcc, s[46:47]")
        a("s_cmp_eq_u64 s[48:49], s[46:47]")
        a("s_cbranch_scc1 KF_G2")
        a("s_cmp_eq_u64 vcc, 0")
        a("s_cbranch_scc0 KF_G1")
        a(f"s_sleep {optint('gsl', 8)}")
        a.label("KF_G1")
        a("s_sleep 1")
        a("s_branch KF_G0")
        a.label("KF_G2")
    fst(a, "w")
    a("s_barrier")
    fst(a, "w")
    if optint("wob", 0): a(f"s_setprio {optint('wob', 0)}")
    pump(P0, -1, 0)
    for j in range(LD):
        for r in wread(j): a(r)
    bars = 0
    for j in range(64):
        buf = j % NWF
        nv = after("O", j)
        bar = (j + LD) % 8 == 0 and j + LD < 64
        if bar: nv = min(nv, after("W", (j + LD) // 8))
        nl = 4*min(LD-1, 63-j)
        a(f"s_waitcnt vmcnt({min(nv, 63)}) lgkmcnt({nl})")
        for nt in range(2):
            d = vr(ACC+16*nt, 16)
            a(f"v_mfma_f32_32x32x16_bf16 {d}, {vr(WF+buf*8+nt*4,4)}, {vr(OF+4*(j%NOF),4)}, {'0' if j == 0 else d}")
        if bar:
            k = (j + LD) // 8
            a("s_barrier")
            fst(a, "w")
            bars = k
        if j + LD < 64:
            for r in wread(j + LD): a(r)
        pump(RATE, j, bars)
    assert not queue
    fst(a, "w")
    a("s_nop 15")
    a("v_and_b32 v7, 15, v2")
    a("v_lshlrev_b32 v7, 12, v7")
    a("v_lshlrev_b32 v8, 4, v11")
    a("v_add_u32 v7, v7, v8")
    a("v_bfe_u32 v8, v2, 4, 1")
    a("v_lshlrev_b32 v8, 5, v8")
    a("v_add_u32 v7, v7, v8")
    a("s_lshl_b32 s35, s34, 17")
    a("s_lshl_b32 s36, s26, 7")
    a("s_add_u32 s35, s35, s36")
    a("s_add_u32 s36, s35, 0x10000")
    for nt in range(2):
        b = ACC + 16*nt
        for i in range(8):
            a(f"v_cvt_pk_bf16_f32 v{b+i}, v{b+2*i}, v{b+2*i+1}")
        a("s_nop 1")
        a(f"v_permlane32_swap_b32 v{b}, v{b+2}")
        a(f"v_permlane32_swap_b32 v{b+1}, v{b+3}")
        a(f"v_permlane32_swap_b32 v{b+4}, v{b+6}")
        a(f"v_permlane32_swap_b32 v{b+5}, v{b+7}")
        a("s_nop 1")
        for i in range(4):
            a(f"v_permlane16_swap_b32 v{b+i}, v{b+4+i}")
        a("s_nop 1")
        a(f"buffer_store_dwordx4 {vr(b,4)}, v7, s[16:19], s35 offen offset:{nt*64}{smod('g')}")
        a(f"buffer_store_dwordx4 {vr(b+4,4)}, v7, s[16:19], s36 offen offset:{nt*64}{smod('g')}")
    if "fst" in Opt.EXP:
        a("s_cmp_lg_u32 s24, 0")
        a("s_cbranch_scc1 K2_END")
        fst_flush(a, "w", 1)
    a("s_endpgm")
```

```python
from common import *
K1_SLOTS = 8
K1_STAGE = 20480
K1_LDS = K1_SLOTS * K1_STAGE

def gen_k1(a):
    store_mod = smod("q")
    name = "k1_qkv_kernel"
    kernel_header(a, name)
    S = K1_SLOTS
    a("s_cmp_ge_u32 s2, 256")
    a("s_cbranch_scc1 K1_END")
    stamp_start(a)
    a("s_load_dwordx4 s[4:7], s[0:1], 0")
    a("s_load_dwordx2 s[8:9], s[0:1], 80")
    a("v_lshrrev_b32 v1, 6, v0")
    a("v_and_b32 v2, 63, v0")
    a("s_and_b32 s28, s2, 7")
    a("v_readfirstlane_b32 s24, v1")
    a("s_lshr_b32 s29, s2, 3")
    a("s_and_b32 s30, s29, 7")
    a("s_lshr_b32 s31, s29, 3")
    a("s_and_b32 s25, s28, 1")
    a("s_lshl_b32 s25, s25, 3")
    a("s_add_u32 s25, s25, s30")
    a("s_lshr_b32 s26, s28, 1")
    a("s_lshl_b32 s26, s26, 2")
    a("s_add_u32 s26, s26, s31")
    COOP = "coop" in Opt.EXP
    RND = "rot" not in Opt.EXP and not COOP
    if RND:
        a("s_lshl_b32 s49, s31, 1")
        a("s_add_u32 s49, s49, s30")
        if "xo" in Opt.EXP:
            a("s_lshr_b32 s27, s28, 1")
            a("s_lshl_b32 s27, s27, 3")
            a("s_and_b32 s33, s28, 1")
            a("s_lshl_b32 s33, s33, 4")
            a("s_add_u32 s27, s27, s33")
            a("s_and_b32 s27, s27, 31")
        else:
            a("s_mov_b32 s27, 0")
    elif COOP:
        if "xrot0" in Opt.EXP:
            a("s_mov_b32 s27, 0")
        else:
            a("s_lshr_b32 s27, s28, 1")
            a("s_lshl_b32 s27, s27, 3")
            a("s_and_b32 s33, s28, 1")
            a("s_lshl_b32 s33, s33, 4")
            a("s_add_u32 s27, s27, s33")
            a("s_and_b32 s27, s27, 31")
    else:
        a("s_mul_i32 s27, s30, 4")
        a("s_mul_i32 s33, s31, 8")
        a("s_add_u32 s27, s27, s33")
        a("s_and_b32 s27, s27, 31")
    EARLY = "ldearly" in Opt.EXP
    def srds():
        a("s_waitcnt lgkmcnt(0)")
        srd(a, 12, 4, 2048*1024*2)
        srd(a, 16, 6, 1024*3072*2)
        srd(a, 20, 8, WS_END)
    if not EARLY: srds()
    def consumer():
        if EARLY: srds()

        if "ktab" in Opt.EXP:
            import kf
            kf.k1_table(a)
        ACC = 16
        XF = 112
        WF = 144
        vX0, vX1, vW = 3, 4, 5
        vXa0, vXa1, vWa = 6, 7, 8
        def acc(sb, t): return ACC + 16*(sb*3+t)
        def xf(buf, sb): return XF + buf*8 + sb*4
        def wf(buf, t): return WF + buf*12 + t*4
        a("s_and_b32 s34, s24, 1")
        a("s_lshr_b32 s35, s24, 1")
        a("v_and_b32 v9, 31, v2")
        a("s_lshl_b32 s36, s34, 6")
        a("v_add_u32 v9, s36, v9")
        a("v_lshlrev_b32 v9, 6, v9")
        a("v_lshrrev_b32 v10, 5, v2")
        a("v_bfe_u32 v11, v2, 2, 2")
        a("v_xor_b32 v10, v10, v11")
        a("v_lshlrev_b32 v10, 4, v10")
        a(f"v_add_u32 v{vX0}, v9, v10")
        a(f"v_xor_b32 v{vX1}, 32, v{vX0}")
        a("v_lshrrev_b32 v9, 5, v2")
        a("v_lshlrev_b32 v9, 3, v9")
        a("v_add_u32 v9, v9, v11")
        a("v_lshlrev_b32 v9, 7, v9")
        a("v_lshrrev_b32 v10, 1, v11")
        a("v_xor_b32 v10, s35, v10")
        a("v_lshlrev_b32 v10, 6, v10")
        a("v_add_u32 v9, v9, v10")
        a("v_bfe_u32 v10, v2, 4, 1")
        a("v_lshlrev_b32 v10, 5, v10")
        a("v_add_u32 v9, v9, v10")
        a("v_and_b32 v10, 3, v2")
        a("v_lshlrev_b32 v10, 3, v10")
        a("v_add_u32 v9, v9, v10")
        a(f"v_add_u32 v{vW}, 0x2000, v9")
        if COOP:
            a("v_and_b32 v9, 31, v2")
            a("s_and_b32 s36, s28, 1")
            a("s_lshl_b32 s36, s36, 10")
            a("s_lshl_b32 s37, s29, 5")
            a("s_add_u32 s36, s36, s37")
            a("v_add_u32 v9, s36, v9")
            a("v_lshlrev_b32 v9, 11, v9")
            a("v_lshrrev_b32 v10, 5, v2")
            a("v_lshlrev_b32 v11, 6, v10")
            a("v_add_u32 v12, v9, v11")
            a("v_and_b32 v9, 31, v2")
            a("v_min_u32 v9, 23, v9")
            a("v_lshrrev_b32 v11, 3, v9")
            a("v_lshlrev_b32 v11, 11, v11")
            a("v_and_b32 v9, 7, v9")
            a("v_lshlrev_b32 v9, 6, v9")
            a("v_add_u32 v11, v11, v9")
            a("v_mul_u32_u24 v10, 32*6144, v10")
            a("v_add_u32 v13, v11, v10")
            a("s_mul_i32 s36, s29, 6144")
            a("s_lshr_b32 s37, s28, 1")
            a("s_lshl_b32 s37, s37, 9")
            a("s_add_u32 s36, s36, s37")
            a("s_lshl_b32 s37, s24, 1")
            a("s_add_u32 s37, s37, s27")
            for m in range(4):
                a("s_and_b32 s37, s37, 31")
                a("s_lshl_b32 s38, s37, 6")
                a("s_mul_i32 s39, s37, 32*6144")
                a("s_add_u32 s39, s39, s36")
                a("buffer_load_dword v14, v12, s[12:15], s38 offen")
                a("buffer_load_dword v15, v13, s[16:19], s39 offen")
                a("s_add_u32 s37, s37, 8")
        for i in range(96):
            a(f"v_mov_b32 v{ACC+i}, 0")
        if "fuse" in Opt.EXP:
            a("s_cmp_lt_u32 s2, 9")
            a("s_cbranch_scc0 K1_NOZ")
            a("s_cmp_eq_u32 s24, 0")
            a("s_cbranch_scc0 K1_NOZ")
            a("v_lshlrev_b32 v9, 4, v2")
            a("s_lshl_b32 s36, s2, 10")
            a(f"s_add_u32 s36, s36, {hex(WS_FO)}")
            a(f"buffer_store_dwordx4 {vr(ACC,4)}, v9, s[20:23], s36 offen")
            a.label("K1_NOZ")
        if COOP:
            a("s_waitcnt vmcnt(6)")
            a("s_barrier")

        def reads(bufpair, slot_sgpr):
            L = []
            for ks in range(2):
                b = bufpair*2 + ks
                va = vXa0 if ks == 0 else vXa1
                L.append(f"ds_read_b128 {vr(xf(b,0),4)}, v{va}")
                L.append(f"ds_read_b64_tr_b16 {vr(wf(b,0),2)}, v{vWa} offset:{(16*ks)*128}")
                L.append(f"ds_read_b64_tr_b16 {vr(wf(b,0)+2,2)}, v{vWa} offset:{(16*ks+4)*128}")
                L.append(f"ds_read_b128 {vr(xf(b,1),4)}, v{va} offset:2048")
                for t in (1, 2):
                    L.append(f"ds_read_b64_tr_b16 {vr(wf(b,t),2)}, v{vWa} offset:{t*4096+(16*ks)*128}")
                    L.append(f"ds_read_b64_tr_b16 {vr(wf(b,t)+2,2)}, v{vWa} offset:{t*4096+(16*ks+4)*128}")
            return L
        def mfmas(bufpair):
            L = []
            for ks in range(2):
                b = bufpair*2 + ks
                for t in range(3):
                    for sb in range(2):
                        d = vr(acc(sb, t), 16)
                        if t < 2:
                            L.append(f"v_mfma_f32_32x32x16_bf16 {d}, {vr(wf(b,t),4)}, {vr(xf(b,sb),4)}, {d}")
                        else:
                            L.append(f"v_mfma_f32_32x32x16_bf16 {d}, {vr(xf(b,sb),4)}, {vr(wf(b,t),4)}, {d}")
            return L
        def set_addr(slot_sgpr):
            a(f"v_add_u32 v{vXa0}, {slot_sgpr}, v{vX0}")
            a(f"v_add_u32 v{vXa1}, {slot_sgpr}, v{vX1}")
            a(f"v_add_u32 v{vWa}, {slot_sgpr}, v{vW}")
        def adv_slot():
            a(f"s_add_u32 s40, s40, {K1_STAGE}")
            a(f"s_cmp_ge_u32 s40, {K1_LDS}")
            a("s_cselect_b32 s40, 0, s40")

        a("s_mov_b32 s40, 0")
        set_addr("s40")
        a("s_barrier")
        if "k1p" not in Opt.EXP: stamp_mid(a, 0)
        for r in reads(0, None): a(r)
        adv_slot()
        a("s_mov_b32 s41, 16")
        a("s_waitcnt lgkmcnt(0)")
        a.label("K1_CLOOP")
        for half in range(2):
            set_addr("s40")
            a("s_barrier")
            R = reads(1-half, None)
            M = mfmas(half)
            ri = 0
            for mi, m in enumerate(M):
                if "nomfma" not in Opt.EXP: a(m)
                n = 2 if mi < 8 else 0
                for _ in range(n):
                    if "noread" not in Opt.EXP and not ("notr" in Opt.EXP and "tr_b16" in R[ri]) and not ("nob128" in Opt.EXP and "b128" in R[ri]): a(R[ri])
                    ri += 1
            assert ri == 16
            adv_slot()
            if half == 1:
                a("s_sub_u32 s41, s41, 1")
                a("s_cmp_lg_u32 s41, 0")
            a("s_waitcnt lgkmcnt(0)")
        if "k1p" in Opt.EXP and Opt.STAMP:
            a("s_cselect_b32 s49, 1, 0")
            a("s_cmp_eq_u32 s41, 12")
            a("s_cbranch_scc0 K1_P1")
            stamp_mid(a, 0)
            a.label("K1_P1")
            a("s_cmp_eq_u32 s41, 8")
            a("s_cbranch_scc0 K1_P2")
            stamp_mid(a, 1)
            a.label("K1_P2")
            a("s_cmp_lg_u32 s49, 0")
        a("s_cbranch_scc1 K1_CLOOP")
        if "k1p" not in Opt.EXP: stamp_mid(a, 1)
        a("s_nop 15")
        a("v_lshlrev_b32 v9, 4, v2")
        a("s_lshl_b32 s42, s26, 1")
        a("s_add_u32 s42, s42, s35")
        a("s_lshl_b32 s42, s42, 6")
        a("s_lshl_b32 s43, s25, 2")
        a("s_lshl_b32 s44, s34, 1")
        a("s_add_u32 s42, s42, s43")
        a("s_add_u32 s42, s42, s44")
        a("s_lshl_b32 s43, s42, 12")
        a("s_lshl_b32 s42, s42, 11")
        a(f"s_mov_b32 s45, {hex(f32bits(QSCALE))}")
        for t in range(3):
            for sb in range(2):
                base = acc(sb, t)
                if t == 0:
                    for i in range(16):
                        a(f"v_mul_f32 v{base+i}, s45, v{base+i}")
                for i in range(8):
                    a(f"v_cvt_pk_bf16_f32 v{base+i}, v{base+2*i}, v{base+2*i+1}")
                if t == 0:
                    a(f"s_add_u32 s46, s42, {hex(WS_QF + sb*2048)}")
                else:
                    a(f"s_add_u32 s46, s43, {hex(WS_KV + sb*4096 + (t-1)*2048)}")
                a(f"buffer_store_dwordx4 {vr(base,4)}, v9, s[20:23], s46 offen{store_mod}")
                a(f"buffer_store_dwordx4 {vr(base+4,4)}, v9, s[20:23], s46 offen offset:1024{store_mod}")
        maxend(a, 0, 4)
        if Opt.STAMP:
            a("s_cmp_lg_u32 s24, 0")
            a("s_cbranch_scc1 K1_END")
            stamp_end(a, 0, 8, "K1_ST")
        a("s_endpgm")
    def loader():
        a.label("K1_LOADER")
        a("s_sub_u32 s34, s24, 4")
        a("v_lshrrev_b32 v3, 2, v2")
        a("v_lshlrev_b32 v3, 11, v3")
        a("v_and_b32 v4, 3, v2")
        a("v_bfe_u32 v5, v2, 4, 2")
        a("v_xor_b32 v4, v4, v5")
        a("v_lshlrev_b32 v4, 4, v4")
        a("v_add_u32 v3, v3, v4")
        if "xfull" in Opt.EXP:
            a("v_lshrrev_b32 v3, 3, v2")
            a("v_lshlrev_b32 v3, 11, v3")
            a("v_and_b32 v4, 7, v2")
            a("v_lshlrev_b32 v4, 4, v4")
            a("v_add_u32 v3, v3, v4")
        a("v_lshrrev_b32 v6, 3, v2")
        a("v_mul_u32_u24 v6, 6144, v6")
        a("v_bfe_u32 v4, v2, 2, 1")
        a("v_bfe_u32 v5, v2, 4, 1")
        a("v_xor_b32 v4, v4, v5")
        a("v_lshlrev_b32 v4, 6, v4")
        a("v_add_u32 v6, v6, v4")
        a("v_and_b32 v4, 3, v2")
        a("v_lshlrev_b32 v4, 4, v4")
        a("v_add_u32 v6, v6, v4")
        a("s_lshl_b32 s36, s25, 18")
        a("s_lshl_b32 s37, s34, 16")
        a("s_add_u32 s36, s36, s37")
        a("s_mul_i32 s37, s34, 8*6144")
        a("s_lshl_b32 s38, s26, 7")
        a("s_add_u32 s37, s37, s38")
        a("s_lshl_b32 s38, s34, 11")
        a("s_lshl_b32 s39, s34, 10")
        a("s_add_u32 s39, s39, 0x2000")
        a("s_mov_b32 s40, 0")
        if EARLY: srds()
        LS = "k1l" in Opt.EXP
        LM = "k1m" in Opt.EXP
        mst = [0]
        def mstamp():
            if not LM: return
            if mst[0] > 0:
                a("s_waitcnt lgkmcnt(0)")
                a(f"v_writelane_b32 v30, s50, {mst[0]-1}")
            a("s_memrealtime s[50:51]")
            mst[0] += 1
        if LM:
            a("v_mov_b32 v30, 0")
            a("s_waitcnt lgkmcnt(0)")
            a("v_writelane_b32 v30, s96, 63")
        lst = [0]
        def lstamp():
            if LS and lst[0] < 16:
                a(f"s_memrealtime s[{50+2*lst[0]}:{51+2*lst[0]}]")
                lst[0] += 1
        lstamp()
        def issue():
            sl = "s27"
            if RND:
                a("s_add_u32 s47, s27, s49")
                a("s_and_b32 s47, s47, 7")
                a("s_and_b32 s48, s27, 24")
                a("s_or_b32 s47, s47, s48")
                sl = "s47"
            if "xfull" in Opt.EXP:
                a(f"s_lshr_b32 s42, {sl}, 1")
                a("s_lshl_b32 s42, s42, 7")
                a(f"s_and_b32 s44, {sl}, 1")
                a("s_lshl_b32 s44, s44, 17")
                a("s_add_u32 s42, s42, s44")
                a("s_lshl_b32 s44, s25, 18")
                a("s_add_u32 s42, s42, s44")
                a("s_lshl_b32 s44, s34, 15")
                a("s_add_u32 s42, s42, s44")
            else:
                a(f"s_lshl_b32 s42, {sl}, 6")
                a("s_add_u32 s42, s42, s36")
            a(f"s_mul_i32 s43, {sl}, 32*6144")
            a("s_add_u32 s43, s43, s37")
            a("s_add_u32 m0, s40, s38")
            a(f"s_add_u32 s44, s42, {0x4000 if 'xfull' in Opt.EXP else 0x8000}")
            a("buffer_load_dwordx4 v3, s[12:15], s42 offen lds")
            a("s_add_u32 m0, m0, 1024")
            a("s_add_u32 s45, s43, 2048")
            a("buffer_load_dwordx4 v3, s[12:15], s44 offen lds")
            a("s_add_u32 m0, s40, s39")
            a("s_add_u32 s46, s43, 4096")
            a("buffer_load_dwordx4 v6, s[16:19], s43 offen lds")
            a("s_add_u32 m0, m0, 4096")
            a("s_add_u32 s27, s27, 1")
            a("buffer_load_dwordx4 v6, s[16:19], s45 offen lds")
            a("s_add_u32 m0, m0, 4096")
            a("s_and_b32 s27, s27, 31")
            a("buffer_load_dwordx4 v6, s[16:19], s46 offen lds")
            a(f"s_add_u32 s40, s40, {K1_STAGE}")
            a(f"s_cmp_ge_u32 s40, {K1_LDS}")
            a("s_cselect_b32 s40, 0, s40")
        n0 = 8; step = 2
        for o in Opt.EXP:
            if o.startswith("n0_"): n0 = int(o[3:])
            if o.startswith("st_"): step = int(o[3:])
        issued = n0
        ramp = []
        j = -1
        while True:
            wait = 5 * (issued - 1 - (j + 1))
            lim = min(32, j + 1 + S) if j >= 0 else S
            lim = min(32, j + S + 1) if j >= 0 else S
            n = min(step if issued < j + S else 1, lim - issued)
            n = max(n, 0)
            if j >= 0 and issued == j + S and n == 1 and wait == 5*(S-2): break
            ramp.append((wait, n))
            issued += n
            j += 1
        jsteady = j
        print("K1 ramp", n0, step, ramp, "steady from", jsteady)
        if COOP: a("s_barrier")
        a(f"s_mov_b32 s41, {n0}")
        a.label("K1_L0")
        issue()
        a("s_sub_u32 s41, s41, 1")
        a("s_cmp_lg_u32 s41, 0")
        a("s_cbranch_scc1 K1_L0")
        lstamp()
        for idx, (wait, n) in enumerate(ramp):
            a(f"s_waitcnt vmcnt({wait})")
            lstamp()
            a("s_barrier")
            lstamp()
            mstamp()
            if n:
                if n == 1:
                    issue()
                else:
                    a(f"s_mov_b32 s41, {n}")
                    a.label(f"K1_R{idx}")
                    issue()
                    a("s_sub_u32 s41, s41, 1")
                    a("s_cmp_lg_u32 s41, 0")
                    a(f"s_cbranch_scc1 K1_R{idx}")
        if LS:
            for q in range(5):
                a(f"s_waitcnt vmcnt({5*(S-2)})")
                lstamp()
                a("s_barrier")
                lstamp()
                issue()
            jsteady += 5
        if LM:
            for q in range(32 - S - jsteady):
                a(f"s_waitcnt vmcnt({5*(S-2)})")
                a("s_barrier")
                mstamp()
                issue()
        else:
            a(f"s_mov_b32 s41, {32 - S - jsteady}")
            a.label("K1_LLOOP")
            a(f"s_waitcnt vmcnt({5*(S-2)})")
            a("s_barrier")
            issue()
            a("s_sub_u32 s41, s41, 1")
            a("s_cmp_lg_u32 s41, 0")
            a("s_cbranch_scc1 K1_LLOOP")
        PF = "nopf" not in Opt.EXP
        if PF:
            a("s_load_dwordx2 s[50:51], s[0:1], 24")
            a("s_load_dwordx4 s[52:55], s[0:1], 32")
            a("s_cmp_ge_u32 s29, 16")
            a("s_waitcnt lgkmcnt(0)")
            a("s_cselect_b32 s52, s54, s52")
            a("s_cselect_b32 s53, s55, s53")
            a("s_cmp_lt_u32 s34, 2")
            a("s_cselect_b32 s56, s50, s52")
            a("s_cselect_b32 s57, s51, s53")
            a(f"s_mov_b32 s58, {hex(2048*1024*2)}")
            a(f"s_cselect_b32 s58, s58, {hex(2048*2048*2)}")
            a("s_mov_b32 s59, 0x20000")
            a("s_and_b32 s60, s29, 15")
            a("s_lshl_b32 s61, s29, 17")
            a("s_lshl_b32 s62, s28, 8")
            a("s_add_u32 s61, s61, s62")
            a("s_lshl_b32 s62, s34, 7")
            a("s_add_u32 s61, s61, s62")
            a("s_lshl_b32 s62, s60, 18")
            a("s_cmp_lt_u32 s34, 2")
            a("s_cselect_b32 s61, s61, s62")
            a("s_cselect_b32 s63, 11, 12")
            a("s_cmp_eq_u32 s34, 3")
            a(f"s_cselect_b32 s61, {hex(1024*4096)}, s61")
            a("s_cselect_b32 s63, 17, s63")
            a("s_cselect_b32 s60, 31, 63")
            a("v_and_b32 v8, s60, v2")
            a("v_lshlrev_b32 v8, s63, v8")
            a("buffer_load_dword v9, v8, s[56:59], s61 offen")
        WPF = "k1wpf" in Opt.EXP
        if WPF:
            a("s_load_dwordx2 s[50:51], s[0:1], 16")
            a("s_lshl_b32 s60, s29, 2")
            a("s_add_u32 s60, s60, s34")
            a("s_lshl_b32 s60, s60, 14")
            a("s_and_b32 s61, s28, 1")
            a("s_lshl_b32 s61, s61, 10")
            a("s_add_u32 s60, s60, s61")
            a("v_lshrrev_b32 v8, 3, v2")
            a("v_lshlrev_b32 v8, 11, v8")
            a("v_and_b32 v10, 7, v2")
            a("v_lshlrev_b32 v10, 7, v10")
            a("v_add_u32 v8, v8, v10")
            a("s_waitcnt lgkmcnt(0)")
            srd(a, 56, 50, 1024*1024*2)
            a("buffer_load_dword v9, v8, s[56:59], s60 offen")
        CPF = "k1cpf" in Opt.EXP
        if CPF:
            a("s_getpc_b64 s[52:53]")
            a.label("K1_PC")
            a("s_add_u32 s52, s52, K1_END-K1_PC")
            a("s_addc_u32 s53, s53, 0")
            a("s_lshl_b32 s60, s34, 13")
            a("v_lshlrev_b32 v12, 7, v2")
            a("v_add_u32 v12, s60, v12")
            a("v_min_u32 v12, K2_END-K1_END, v12")
            a("v_mov_b32 v13, s53")
            a("v_add_co_u32 v12, vcc, s52, v12")
            a("s_nop 1")
            a("v_addc_co_u32 v13, vcc, 0, v13, vcc")
            a("global_load_dword v11, v[12:13], off")
        for j in range(32-S, 32):
            n = max(0, (30 - j)) * 5 + (1 if PF else 0) + (1 if WPF else 0) + (1 if CPF else 0)
            a(f"s_waitcnt vmcnt({n})")
            a("s_barrier")
            mstamp()
        if LM:
            mstamp()
            a("s_lshl_b32 s91, s2, 10")
            a("s_lshl_b32 s92, s34, 8")
            a("s_add_u32 s91, s91, s92")
            a(f"s_add_u32 s91, s91, {hex(WS_STAMP + 65536)}")
            a("v_lshlrev_b32 v12, 2, v2")
            a("buffer_store_dword v30, v12, s[20:23], s91 offen")
        if LS:
            a("s_getreg_b32 s49, hwreg(HW_REG_XCC_ID)")
            a("s_waitcnt lgkmcnt(0)")
            a("v_mov_b32 v20, s96")
            for i in range(15):
                a(f"v_mov_b32 v{21+i}, s{50+2*i}")
            a("s_lshl_b32 s91, s2, 8")
            a("s_lshl_b32 s92, s34, 6")
            a("s_add_u32 s91, s91, s92")
            a(f"s_add_u32 s91, s91, {hex(WS_STAMP + 65536)}")
            a("v_mov_b32 v12, s91")
            a("v_cmp_eq_u32 vcc, 0, v2")
            a("s_and_saveexec_b64 s[88:89], vcc")
            a("s_cbranch_execz K1_END")
            for i in range(4):
                a(f"buffer_store_dwordx4 {vr(20+4*i,4)}, v12, s[20:23], 0 offen offset:{16*i}")
    if "ldfirst" in Opt.EXP:
        a("s_cmp_lt_u32 s24, 4")
        a("s_cbranch_scc1 K1_CONS")
        loader()
        a("s_endpgm")
        a.label("K1_CONS")
        consumer()
    else:
        a("s_cmp_ge_u32 s24, 4")
        a("s_cbranch_scc1 K1_LOADER")
        consumer()
        loader()
    a.label("K1_END")
    a("s_endpgm")
    return name
```
